```python
import torch

def _softmax(x, axis=-1):
    return torch.softmax(x, dim=axis)
def _gelu(x):
    return torch.nn.functional.gelu(x, approximate="tanh")
def _silu(x):
    return torch.nn.functional.silu(x)
def _sigmoid(x):
    return torch.sigmoid(x)
def _layernorm(x, axis=-1, eps=1e-5):
    m = x.mean(dim=axis, keepdim=True)
    v = x.var(dim=axis, keepdim=True, unbiased=False)
    return (x - m) / torch.sqrt(v + eps)
def _scatter_add(tgt, idx, src, axis=0):
    return tgt.clone().index_add_(axis, idx, src)
def _segment_sum(src, seg, n):
    out = torch.zeros((n,) + src.shape[1:], dtype=src.dtype)
    return out.index_add_(0, seg, src)
def _pad(x, pw):
    flat = tuple(v for pair in reversed(pw) for v in pair)
    return torch.nn.functional.pad(x, flat)

kernel_name = 'sequential_preLN__ssm_conv_h3__dense_activation_mish__prompt'

def setup_inputs():

    _w = (lambda a: (lambda t: t.to(torch.bfloat16) if t.is_floating_point() else t)(torch.as_tensor(a)))
    def _A_setup():
        B, S, D = 1, 2048, 448
        ks = 4
        return {
            "q": _w((lambda *s: torch.randn(*s, dtype=torch.bfloat16) * 0.05)(B, S, D)),
            "k": _w((lambda *s: torch.randn(*s, dtype=torch.bfloat16) * 0.2)(B, S, D)),
            "v": _w((lambda *s: torch.randn(*s, dtype=torch.bfloat16) * 0.2)(B, S, D)),
            "shift_k": _w((lambda *s: torch.randn(*s, dtype=torch.bfloat16) * 0.2)(D, ks) * 0.5),
            "ssm_k": _w((lambda *s: torch.randn(*s, dtype=torch.bfloat16) * 0.8)(D, S) * (1.0 / S ** 0.5)),
            "ssm_D": _w((lambda *s: torch.randn(*s, dtype=torch.bfloat16) * 0.2)(D)),
        }
    _A_in = _A_setup()

    def _B_setup():
        B, S, D, F = 1, 2048, 448, 1792
        return {
            "x": _w((lambda *s: torch.randn(*s, dtype=torch.bfloat16) * 0.05)(B, S, D)),
            "w1": _w((lambda *s: torch.randn(*s, dtype=torch.bfloat16) * 0.8)(D, F) * (D ** -0.5)),
            "b1": _w((lambda *s: torch.randn(*s, dtype=torch.bfloat16) * 0.2)(F)),
            "w2": _w((lambda *s: torch.randn(*s, dtype=torch.bfloat16) * 0.1)(F, D) * (F ** -0.5)),
        }
    _B_in = _B_setup()

    return {
        "A_q": _A_in["q"],
        "A_k": _A_in["k"],
        "A_v": _A_in["v"],
        "A_shift_k": _A_in["shift_k"],
        "A_ssm_k": _A_in["ssm_k"],
        "A_ssm_D": _A_in["ssm_D"],
        "B_x": _B_in["x"],
        "B_w1": _B_in["w1"],
        "B_b1": _B_in["b1"],
        "B_w2": _B_in["w2"],
    }

def reference(A_q, A_k, A_v, A_shift_k, A_ssm_k, A_ssm_D, B_x, B_w1, B_b1, B_w2):
    def _A_ref(q, k, v, shift_k, ssm_k, ssm_D):
        B, S, D = q.shape
        ks = shift_k.shape[-1]
        k_pad = _pad(k, ((0, 0), (ks - 1, 0), (0, 0)))
        k_shift = torch.zeros_like(k)
        for t in range(ks):
            k_shift = k_shift + k_pad[:, t:t + S, :] * shift_k[:, ks - 1 - t][None, None, :]
        kv = k_shift * v
        L = 2 * S
        kv_pad = _pad(kv, ((0, 0), (0, S), (0, 0)))
        kf_pad = _pad(ssm_k, ((0, 0), (0, S)))
        kv_f = (lambda x, axes=(-2,-1): torch.fft.rfft2(x.float(), dim=axes))(kv_pad[:, None, :, :], axes=(1, 2))
        kf_f = (lambda x, axes=(-2,-1): torch.fft.rfft2(x.float(), dim=axes))(kf_pad[:, None, :], axes=(1, 2))
        kf_f = (lambda x, *d: x.permute(*d))(kf_f, 1, 2, 0)
        y_f = kv_f * kf_f[None, :, :, :]
        y = (lambda x, s, axes=(-2,-1): torch.fft.irfft2(x, s=s, dim=axes).to(torch.bfloat16))(y_f, (1, L), axes=(1, 2))[:, 0, :S, :]
        y = y + kv * ssm_D[None, None, :]
        return q * y

    def _B_ref(x, w1, b1, w2):
        h = torch.einsum("bsd,df->bsf", x, w1) + b1
        sp = torch.log1p(torch.exp(-torch.abs(h))) + torch.where(h > 0, h, torch.zeros_like(h))
        act = h * torch.tanh(sp)
        return torch.einsum("bsf,fd->bsd", act, w2)

    x = A_q
    h = x + _A_ref(_layernorm(x, axis=-1), A_k, A_v, A_shift_k, A_ssm_k, A_ssm_D)
    h2 = h + _B_ref(_layernorm(h, axis=-1), B_w1, B_b1, B_w2)
    return h2
```

```python
class A:
    def __init__(self):
        self.lines = []
        self.uid = 0
    def __call__(self, s=""):
        for l in s.split("\n"):
            self.lines.append(l)
    def label(self, base):
        self.uid += 1
        return f"L{base}_{self.uid}"
    def text(self):
        return "\n".join(self.lines) + "\n"

HEADER = '''.amdgcn_target "amdgcn-amd-amdhsa--gfx950"
.text
'''
def kernel_open(name):
    return f""".text
.globl {name}
.p2align 8
.type {name},@function
{name}:"""
def kernel_desc(name, vgpr=256, sgpr=102, accum=None, extra=""):
    if accum is None: accum = min(256, (vgpr+3)//4*4)
    return f""".section .rodata,"a"
.p2align 6
.amdhsa_kernel {name}
  .amdhsa_next_free_vgpr {vgpr}
  .amdhsa_next_free_sgpr {sgpr}
  .amdhsa_accum_offset {accum}
  .amdhsa_group_segment_fixed_size 0
  .amdhsa_kernarg_size 104
  .amdhsa_user_sgpr_count 2
  .amdhsa_user_sgpr_kernarg_segment_ptr 1
  .amdhsa_system_sgpr_workgroup_id_x 1
{extra}.end_amdhsa_kernel
"""
```

```python
from asmlib import *
import sys
S, D, F = 2048, 448, 1792
def srd(a, r, ptr, nbytes):
    a(f"""  s_mov_b32 s{r}, s{ptr}
  s_and_b32 s{r+1}, s{ptr+1}, 0xffff
  s_mov_b32 s{r+2}, {nbytes}
  s_mov_b32 s{r+3}, 0x00020000""")
def rne_bf16(a, v, t):
    a(f"""  v_cvt_pk_bf16_f32 {v}, {v}, {v}
  v_and_b32 {v}, 0xffff0000, {v}""")
def gen(nextra=0):
    a = A()
    a(f"; @launch kernel=conv_kernel grid=({D*8},1,1) block=(256,1,1) lds=20480")
    for i in range(nextra):
        a(f"; @launch kernel=nop_kernel grid=(256,1,1) block=(256,1,1) lds=0")
    a(f"; @launch kernel=mlp_kernel grid=({S},1,1) block=(256,1,1) lds=16384")
    a(HEADER)
    a(kernel_open("conv_kernel"))
    a(f"""
  s_cmp_ge_u32 s2, {D*8}
  s_cbranch_scc1 Lc_end
  s_load_dwordx4 s[4:7], s[0:1], 8      ; k, v
  s_load_dwordx4 s[8:11], s[0:1], 24
  s_load_dwordx2 s[12:13], s[0:1], 40   ; ssm_D
  s_load_dwordx2 s[14:15], s[0:1], 96   ; ws
  s_waitcnt lgkmcnt(0)""")
    srd(a, 16, 4, S*D*2); srd(a, 20, 6, S*D*2); srd(a, 24, 8, D*4*2); srd(a, 28, 10, D*S*2); srd(a, 32, 12, D*2); srd(a, 36, 14, S*D*2)
    a(f"""
  s_lshr_b32 s40, s2, 3        ; c
  s_and_b32 s41, s2, 7         ; tb
  s_add_u32 s42, s41, 1
  s_lshl_b32 s42, s42, 8       ; n = (tb+1)*256
  s_lshl_b32 s43, s40, 3
  v_mov_b32 v1, s43
  buffer_load_ushort v10, v1, s[24:27], 0 offen
  buffer_load_ushort v11, v1, s[24:27], 0 offen offset:2
  buffer_load_ushort v12, v1, s[24:27], 0 offen offset:4
  buffer_load_ushort v13, v1, s[24:27], 0 offen offset:6
  s_lshl_b32 s43, s40, 1
  v_mov_b32 v1, s43
  buffer_load_ushort v14, v1, s[32:35], 0 offen
  v_lshlrev_b32 v2, 2, v0
  v_mov_b32 v3, 0
  ds_write_b32 v2, v3 offset:8192
  s_waitcnt vmcnt(0)
  v_lshlrev_b32 v10, 16, v10
  v_lshlrev_b32 v11, 16, v11
  v_lshlrev_b32 v12, 16, v12
  v_lshlrev_b32 v13, 16, v13
  v_lshlrev_b32 v14, 16, v14
  s_mov_b32 s44, 0
  s_mov_b32 s45, 896
Lc_fill:
  v_add_u32 v4, s44, v0          ; s index
  v_mul_lo_u32 v5, v4, s45
  s_lshl_b32 s43, s40, 1
  v_add_u32 v5, s43, v5
  buffer_load_ushort v20, v5, s[16:19], 0 offen      ; k[s]
  v_subrev_u32 v6, 896, v5
  v_subrev_u32 v7, 1792, v5
  v_subrev_u32 v8, 2688, v5
  buffer_load_ushort v21, v6, s[16:19], 0 offen      ; k[s-1]
  buffer_load_ushort v22, v7, s[16:19], 0 offen      ; k[s-2]
  buffer_load_ushort v23, v8, s[16:19], 0 offen      ; k[s-3]
  buffer_load_ushort v24, v5, s[20:23], 0 offen      ; v[s]
  s_lshl_b32 s43, s40, 12
  v_lshlrev_b32 v9, 1, v4
  v_add_u32 v9, s43, v9
  buffer_load_ushort v25, v9, s[28:31], 0 offen      ; f[c][s]
  s_waitcnt vmcnt(0)
  v_lshlrev_b32 v20, 16, v20
  v_lshlrev_b32 v21, 16, v21
  v_lshlrev_b32 v22, 16, v22
  v_lshlrev_b32 v23, 16, v23
  v_lshlrev_b32 v24, 16, v24
  v_lshlrev_b32 v25, 16, v25
  v_mul_f32 v26, v20, v10
  v_fmac_f32 v26, v21, v11
  v_fmac_f32 v26, v22, v12
  v_fmac_f32 v26, v23, v13
  v_mul_f32 v26, v26, v24""")
    rne_bf16(a, "v26", "v27")
    a(f"""
  v_lshlrev_b32 v9, 2, v4
  ds_write_b32 v9, v26
  ds_write_b32 v9, v25 offset:9216
  s_add_u32 s44, s44, 256
  s_cmp_lt_u32 s44, s42
  s_cbranch_scc1 Lc_fill
  s_waitcnt lgkmcnt(0)
  s_barrier
  s_lshl_b32 s43, s41, 8
  v_add_u32 v4, s43, v0          ; t
  v_lshlrev_b32 v5, 2, v4
  v_add_u32 v5, 9216, v5         ; addr f[t]
  v_mov_b32 v6, 0
  v_mov_b32 v30, 0
  s_mov_b32 s44, 0
Lc_loop:
  ds_read_b32 v31, v6
  ds_read_b32 v32, v5
  v_add_u32 v6, 4, v6
  v_subrev_u32 v5, 4, v5
  s_waitcnt lgkmcnt(0)
  v_fmac_f32 v30, v31, v32
  s_add_u32 s44, s44, 1
  s_cmp_lt_u32 s44, s42
  s_cbranch_scc1 Lc_loop
  v_lshlrev_b32 v5, 2, v4
  ds_read_b32 v31, v5
  s_waitcnt lgkmcnt(0)
  v_fmac_f32 v30, v31, v14""")
    a(f"""
  v_cvt_pk_bf16_f32 v30, v30, v30
  v_mul_lo_u32 v5, v4, s45
  s_lshl_b32 s43, s40, 1
  v_add_u32 v5, s43, v5
  buffer_store_short v30, v5, s[36:39], 0 offen
  s_waitcnt vmcnt(0)
Lc_end:
  s_endpgm""")
    a(kernel_open("nop_kernel"))
    a("  s_endpgm")
    a(kernel_open("mlp_kernel"))
    a(f"""
  s_cmp_ge_u32 s2, {S}
  s_cbranch_scc1 Lm_end
  s_load_dwordx2 s[4:5], s[0:1], 0      ; x
  s_load_dwordx4 s[8:11], s[0:1], 56    ; w1, b1
  s_load_dwordx4 s[12:15], s[0:1], 72   ; w2, out
  s_load_dwordx2 s[6:7], s[0:1], 96     ; ws
  s_waitcnt lgkmcnt(0)""")
    srd(a, 16, 4, S*D*2); srd(a, 20, 6, S*D*2); srd(a, 24, 8, D*F*2); srd(a, 28, 10, F*2); srd(a, 32, 12, F*D*2); srd(a, 36, 14, S*D*2)
    def blocksum(v, tmp):
        a(f"""
  v_lshlrev_b32 v40, 2, v0
  s_barrier
  ds_write_b32 v40, {v} offset:12288
  s_waitcnt lgkmcnt(0)
  s_barrier
  v_mov_b32 v41, 12288
  v_mov_b32 {v}, 0
  s_mov_b32 s46, 0""")
        l = a.label("bs")
        a(f"""{l}:
  ds_read_b32 {tmp}, v41
  v_add_u32 v41, 4, v41
  s_waitcnt lgkmcnt(0)
  v_add_f32 {v}, {v}, {tmp}
  s_add_u32 s46, s46, 1
  s_cmp_lt_u32 s46, 256
  s_cbranch_scc1 {l}""")
    a(f"""
  s_mul_i32 s40, s2, 896
  v_lshlrev_b32 v1, 2, v0
  v_add_u32 v2, s40, v1
  v_mov_b32 v3, 0x7fffffff
  v_cmp_gt_u32 vcc, 224, v0
  s_nop 1
  v_cndmask_b32 v2, v3, v2, vcc
  buffer_load_dword v10, v2, s[16:19], 0 offen   ; x pair
  buffer_load_dword v11, v2, s[20:23], 0 offen   ; y pair
  s_waitcnt vmcnt(0)
  v_lshlrev_b32 v12, 16, v10
  v_and_b32 v13, 0xffff0000, v10
  v_lshlrev_b32 v14, 16, v11
  v_and_b32 v15, 0xffff0000, v11
  v_add_f32 v16, v12, v13""")
    blocksum("v16", "v42")
    a(f"""
  v_mul_f32 v16, {hex(0x3b124925)}, v16   ; 1/448
  v_sub_f32 v17, v12, v16
  v_sub_f32 v18, v13, v16
  v_mul_f32 v19, v17, v17
  v_fmac_f32 v19, v18, v18
  v_cndmask_b32 v19, 0, v19, vcc""")
    blocksum("v19", "v42")
    a(f"""
  v_mul_f32 v19, {hex(0x3b124925)}, v19
  v_add_f32 v19, 0x3727c5ac, v19
  v_rsq_f32 v19, v19
  s_nop 1
  v_mul_f32 v17, v17, v19
  v_mul_f32 v18, v18, v19
  v_fma_f32 v20, v17, v14, v12
  v_fma_f32 v21, v18, v15, v13
  v_cvt_pk_bf16_f32 v22, v20, v21
  v_lshlrev_b32 v20, 16, v22
  v_and_b32 v21, 0xffff0000, v22
  v_cndmask_b32 v20, 0, v20, vcc
  v_cndmask_b32 v21, 0, v21, vcc
  v_add_f32 v16, v20, v21""")
    blocksum("v16", "v42")
    a(f"""
  v_mul_f32 v16, {hex(0x3b124925)}, v16
  v_sub_f32 v17, v20, v16
  v_sub_f32 v18, v21, v16
  v_mul_f32 v19, v17, v17
  v_fmac_f32 v19, v18, v18
  v_cndmask_b32 v19, 0, v19, vcc""")
    blocksum("v19", "v42")
    a(f"""
  v_mul_f32 v19, {hex(0x3b124925)}, v19
  v_add_f32 v19, 0x3727c5ac, v19
  v_rsq_f32 v19, v19
  s_nop 1
  v_mul_f32 v17, v17, v19
  v_mul_f32 v18, v18, v19
  v_cvt_pk_bf16_f32 v22, v17, v18
  v_lshlrev_b32 v17, 16, v22
  v_and_b32 v18, 0xffff0000, v22
  v_lshlrev_b32 v23, 3, v0
  ds_write_b64 v23, v[17:18]       ; placeholder fixed below
""".replace("ds_write_b64 v23, v[17:18]       ; placeholder fixed below", "ds_write_b32 v23, v17\n  ds_write_b32 v23, v18 offset:4"))
    a(f"""
  s_waitcnt lgkmcnt(0)
  s_barrier
  s_mov_b32 s47, 0
Lm_i:
  v_add_u32 v24, s47, v0
  v_lshlrev_b32 v24, 1, v24
  buffer_load_ushort v25, v24, s[28:31], 0 offen
  v_mov_b32 v26, 0
  s_waitcnt vmcnt(0)
  v_lshlrev_b32 v25, 16, v25       ; acc = b1
  s_mov_b32 s46, 0
  s_mov_b32 s48, 0
Lm_k:
  buffer_load_ushort v27, v24, s[24:27], s48 offen
  ds_read_b32 v28, v26
  v_add_u32 v26, 4, v26
  s_waitcnt vmcnt(0) lgkmcnt(0)
  v_lshlrev_b32 v27, 16, v27
  v_fmac_f32 v25, v27, v28
  s_add_u32 s48, s48, 3584
  s_add_u32 s46, s46, 1
  s_cmp_lt_u32 s46, 448
  s_cbranch_scc1 Lm_k
  ; mish
  v_mul_f32 v27, 0x3fb8aa3b, v25
  v_exp_f32 v27, v27
  s_nop 1
  v_add_f32 v27, 1.0, v27
  v_fma_f32 v27, v27, v27, 1.0
  v_rcp_f32 v27, v27
  s_nop 1
  v_fma_f32 v27, v27, -2.0, 1.0
  v_mul_f32 v25, v25, v27
  v_cvt_pk_bf16_f32 v25, v25, v25
  v_and_b32 v25, 0xffff0000, v25
  v_lshlrev_b32 v24, 1, v24
  ds_write_b32 v24, v25 offset:2048
  s_add_u32 s47, s47, 256
  s_cmp_lt_u32 s47, 1792
  s_cbranch_scc1 Lm_i
  s_waitcnt lgkmcnt(0)
  s_barrier
  v_mov_b32 v30, 0
  v_mov_b32 v31, 0
  v_mov_b32 v26, 2048
  v_mov_b32 v3, 0x7fffffff
  v_cndmask_b32 v1, v3, v1, vcc
  s_mov_b32 s46, 0
  s_mov_b32 s48, 0
Lm_k2:
  buffer_load_dword v27, v1, s[32:35], s48 offen
  ds_read_b32 v28, v26
  v_add_u32 v26, 4, v26
  s_waitcnt vmcnt(0) lgkmcnt(0)
  v_lshlrev_b32 v29, 16, v27
  v_and_b32 v27, 0xffff0000, v27
  v_fmac_f32 v30, v29, v28
  v_fmac_f32 v31, v27, v28
  s_add_u32 s48, s48, 896
  s_add_u32 s46, s46, 1
  s_cmp_lt_u32 s46, 1792
  s_cbranch_scc1 Lm_k2
  v_add_f32 v30, v30, v20
  v_add_f32 v31, v31, v21
  v_cvt_pk_bf16_f32 v30, v30, v31
  buffer_store_dword v30, v2, s[36:39], 0 offen
  s_waitcnt vmcnt(0)
Lm_end:
  s_endpgm""")
    a(kernel_desc("conv_kernel", vgpr=48, sgpr=64))
    if nextra: a(kernel_desc("nop_kernel", vgpr=8, sgpr=16))
    a(kernel_desc("mlp_kernel", vgpr=48, sgpr=64))
    return a.text()
if __name__ == "__main__":
    open("naive0.s","w").write(gen(0))
    open("naive50.s","w").write(gen(50))
```

```python
import re
TRANS = ("v_exp_f32","v_log_f32","v_rcp_f32","v_rsq_f32","v_sqrt_f32","v_sin_f32","v_cos_f32","v_rcp_iflag_f32")
def parse_regs(tok):
    tok = tok.strip()
    neg = tok.lstrip("-").strip("|")
    m = re.fullmatch(r"([vas])\[(\d+):(\d+)\]", neg)
    if m: return [(m.group(1), i) for i in range(int(m.group(2)), int(m.group(3))+1)]
    m = re.fullmatch(r"([vas])(\d+)", neg)
    if m: return [(m.group(1), int(m.group(2)))]
    if neg == "vcc": return [("s",106),("s",107)]
    if neg == "vcc_lo": return [("s",106)]
    if neg == "vcc_hi": return [("s",107)]
    if neg == "exec": return [("s",126),("s",127)]
    if neg == "m0": return [("s",124)]
    return []
class I:
    __slots__=("text","op","dst","src","kind","passes","srcC","nop","label","store_data","lds_dma","isbranch","dpp")
    def __init__(s, text):
        s.text=text; s.dst=[]; s.src=[]; s.kind="other"; s.passes=0; s.srcC=[]; s.nop=0; s.label=False; s.store_data=[]; s.lds_dma=False; s.isbranch=False; s.dpp=False
        t=text.split(";")[0].strip()
        if not t or t.startswith("."): s.kind="none"; s.op=""; return
        if t.endswith(":"): s.label=True; s.kind="none"; s.op=""; return
        parts=t.split(None,1); op=parts[0]; s.op=op
        rest=parts[1] if len(parts)>1 else ""
        xm=" ".join(m.group(0) for m in re.finditer(r"\b(op_sel|op_sel_hi|neg_lo|neg_hi|quad_perm):\[[^\]]*\]", rest))
        rest=re.sub(r"\b(op_sel|op_sel_hi|neg_lo|neg_hi|quad_perm):\[[^\]]*\]", "", rest).strip()
        ops=[o.strip() for o in rest.split(",")] if rest else []
        mods=""
        if ops:
            last=ops[-1].split(None,1)
            ops[-1]=last[0]
            if len(last)>1: mods=last[1]
        mods+=" "+xm
        R=[parse_regs(o) for o in ops]
        base=re.sub(r"_(e32|e64|dpp|sdwa)$","",op)
        if op=="s_nop": s.kind="nop"; s.nop=int(ops[0],0)+1; return
        if op.startswith("v_mfma"):
            s.kind="mfma"; s.dst=R[0]; s.src=R[1]+R[2]+R[3]; s.srcC=R[3]
            if "32x32x16" in op or "32x32x8" in op: s.passes=8
            elif "16x16x32" in op or "16x16x16" in op: s.passes=4
            elif "32x32x2_f32" in op or "32x32x2f32" in op: s.passes=16; s.kind="sgemm"
            elif "4x4x4" in op: s.passes=2
            else: raise Exception("mfma? "+op)
            return
        if op.startswith("v_"):
            s.kind="valu"
            if base in TRANS: s.kind="trans"
            if base.startswith("v_dot"): s.kind="dot"
            s.dpp = ("quad_perm" in mods or "row_" in mods or "wave_" in mods or op.endswith("_dpp"))
            if base.startswith("v_cmpx"): s.dst=parse_regs("exec")+(R[0] if len(R)==3 else []); s.src=sum(R[-2:],[])
            elif base.startswith("v_cmp"): s.dst=R[0]; s.src=sum(R[1:],[])
            elif base.startswith("v_permlane") and "swap" in base: s.dst=R[0]+R[1]; s.src=R[0]+R[1]; s.kind="permlane"
            elif base in ("v_add_co_u32","v_sub_co_u32","v_addc_co_u32","v_subb_co_u32"): s.dst=R[0]+R[1]; s.src=sum(R[2:],[])
            else:
                s.dst=R[0]; s.src=sum(R[1:],[])
                if base in ("v_fmac_f32","v_dot2c_f32_bf16","v_writelane_b32","v_pk_fmac_f16") or s.dpp or "sdwa" in op or "dst_sel" in mods: s.src=s.src+R[0]
                if base=="v_cndmask_b32" and len(R)==3: s.src=s.src+parse_regs("vcc")
                if base in ("v_readfirstlane_b32","v_readlane_b32"): s.kind="readlane"
            return
        if op.startswith("buffer_") or op.startswith("global_") or op.startswith("flat_"):
            s.kind="vmem"
            lds = (" lds" in " "+mods) or ("load_lds" in op)
            s.lds_dma=lds
            if op in ("buffer_wbl2","buffer_inv"): return
            if "store" in op or "atomic" in op:
                if op.startswith("buffer_"): data=R[0]; s.src=sum(R,[])
                else: data=R[1]; s.src=sum(R,[])
                if len(data)>=3: s.store_data=data
                if "atomic" in op and ("sc0" in mods or "glc" in mods):
                    s.dst=R[0]
            elif lds: s.src=sum(R,[])+parse_regs("m0")
            else: s.dst=R[0]; s.src=sum(R[1:],[])
            return
        if op.startswith("ds_"):
            s.kind="ds"
            if "addtid" in op: s.lds_dma=True
            if op.startswith("ds_read") or op.startswith("ds_bpermute") or op.startswith("ds_permute") or op.startswith("ds_swizzle"): s.dst=R[0]; s.src=sum(R[1:],[])
            else: s.src=sum(R,[])
            return
        if op.startswith("s_"):
            s.kind="salu"
            if op.startswith("s_cbranch") or op in ("s_branch","s_setpc_b64","s_swappc_b64","s_endpgm"): s.isbranch=True; return
            if op.startswith("s_load") or op.startswith("s_memtime") or op.startswith("s_memrealtime") or op.startswith("s_buffer_load"):
                s.kind="smem"; s.dst=R[0]; s.src=sum(R[1:],[]); return
            if op.startswith("s_cmp") or op.startswith("s_bitcmp") or op in ("s_waitcnt","s_barrier","s_setprio","s_sleep"): s.src=sum(R,[]); return
            if R: s.dst=R[0]; s.src=sum(R[1:],[])
            if "saveexec" in op: s.dst=s.dst+parse_regs("exec")
            return
        raise Exception("unknown instr: "+text)
VALUK=("valu","trans","dot","permlane","readlane")
EXEC=set(parse_regs("exec")); M0=("s",124)
def need(p, c):
    n=0
    pd=set(p.dst)
    vec=lambda L:[r for r in L if r[0] in "va"]
    sc=lambda L:[r for r in L if r[0]=="s"]
    cs=set(c.src); cd=set(c.dst)
    if p.kind in VALUK:
        pv=set(vec(p.dst)); psg=set(sc(p.dst))
        if c.kind in ("mfma","sgemm"):
            if pv & cs: n=max(n, 3 if p.kind=="dot" else 2)
            if psg & EXEC: n=max(n,4)
        if c.kind in VALUK:
            if p.kind=="trans" and c.kind!="trans" and pv & cs: n=max(n,1)
            if p.kind=="dot" and pv & (cs|cd) and not (c.op==p.op and not (pv & set(c.src[:-1] if False else []))): n=max(n,3)
            if c.dpp and pv & cs: n=max(n,2)
            if c.dpp and psg & EXEC: n=max(n,5)
            if c.kind=="permlane" and pv & cs: n=max(n,2)
            if c.kind=="permlane" and psg & EXEC: n=max(n,4)
            if c.kind=="readlane" and pv & cs: n=max(n,1)
            if c.kind=="readlane" and psg & EXEC: n=max(n,4)
            if psg & cs: n=max(n, 4 if c.kind=="readlane" else 2)
            if ("sdwa" in p.op or "dst_sel" in p.text or "op_sel" in p.text) and pv & (cs|cd): n=max(n,1)
        if c.kind=="vmem" and psg & cs: n=max(n,5)
        if p.kind=="dot" and c.kind in ("vmem","ds") and pv & cs: n=max(n,3)
    if p.kind=="salu" and M0 in pd and c.lds_dma: n=max(n,1)
    if p.kind=="vmem" and p.store_data and (set(p.store_data) & cd):
        n=max(n, 2 if c.kind in VALUK else 1)
    if p.kind in ("mfma","sgemm"):
        x = p.kind=="mfma"
        idx={2:0,4:1,8:2,16:3}[p.passes]
        if c.kind in ("mfma","sgemm"):
            ab=set(c.src)-set()
            A_B=set(c.src[:len(c.src)-len(c.srcC)])
            if pd & A_B: n=max(n, ([5,8,12,20] if x else [4,6,10,18])[idx])
            if pd & set(c.srcC):
                same = (c.srcC==p.dst and c.passes==p.passes and c.kind==p.kind)
                if same: n=max(n,[2,0,0,0][idx])
                elif x and c.kind=="mfma": n=max(n,[4,6,10,18][idx])
                elif x: n=max(n,[3,6,10,18][idx])
                elif c.kind=="sgemm": n=max(n,[2,4,8,16][idx])
                else: n=max(n,0)
            elif pd & cd and not c.srcC:
                n=max(n, ([5,8,12,20] if x else [4,6,10,18])[idx])
        elif c.kind in VALUK or c.kind in ("vmem","ds"):
            if pd & (cs|cd): n=max(n, ([5,8,12,20] if x else [4,6,10,18])[idx])
            if x and c.kind in VALUK and set(p.srcC) & cd: n=max(n,[1,3,7,15][idx])
    return n
class E:
    def __init__(s): s.ins=[]; s.uid=0; s.vmq=[]; s.dsq=[]
    def _wait(s, q, tags, mx):
        idx=-1
        for t in tags:
            k=[i for i,x in enumerate(q) if x==t]
            if k: idx=max(idx,k[-1])
        if idx<0: return None
        n=len(q)-1-idx
        del q[:idx+1]
        if n>mx:
            del q[:n-mx]; n=mx
        return n
    def __call__(s, text):
        if isinstance(text,(list,tuple)):
            for t in text: s(t)
            return
        for l in text.split("\n"):
            l=l.strip()
            if not l: continue
            if l.startswith("WAIT"):
                parts=[]
                for w in l.split()[1:]:
                    k,t=w.split(":")
                    if k=="vm":
                        n=s._wait(s.vmq,t.split(","),63)
                        if n is not None: parts.append(f"vmcnt({n})")
                    else:
                        n=s._wait(s.dsq,t.split(","),15)
                        if n is not None: parts.append(f"lgkmcnt({n})")
                if parts: s.ins.append(I("s_waitcnt "+" ".join(parts)))
                continue
            i=I(l); s.ins.append(i)
            tag=l.split(";#")[1].strip() if ";#" in l else None
            if i.kind=="vmem" and i.op not in ("buffer_inv",): s.vmq.append(tag)
            elif i.kind=="ds": s.dsq.append(tag)
            elif i.op=="s_waitcnt":
                m=re.search(r"vmcnt\((\d+)\)",l)
                if m:
                    n=int(m.group(1)); del s.vmq[:max(0,len(s.vmq)-n)]
                m=re.search(r"lgkmcnt\((\d+)\)",l)
                if m:
                    n=int(m.group(1)); del s.dsq[:max(0,len(s.dsq)-n)]
    def raw(s, text):
        for l in text.split("\n"):
            i=I(""); i.text=l; s.ins.append(i)
    def label(s, base):
        s.uid+=1; return f"L{base}_{s.uid}"
    def fix(s, verbose=False):
        out=[]; added=0
        for c in s.ins:
            if c.kind=="none": out.append(c); continue
            dist=0; req=0
            for p in reversed(out):
                if p.kind=="none": continue
                if dist>=20: break
                r=need(p,c)-dist
                if r>req: req=r
                dist += p.nop if p.kind=="nop" else 1
            while req>0:
                k=min(req,16); out.append(I(f"s_nop {k-1}")); req-=k; added+=k
                if verbose: print("nop",k,"before",c.text)
            out.append(c)
        s.ins=out; return added
    def text(s):
        return "\n".join((i.text if (i.label or i.kind=="none") else "  "+i.text) for i in s.ins)+"\n"
def interleave(main, fill, start=0, end=None):
    if end is None: end=len(main)
    out=[]; k=0; n=end-start
    for i,m in enumerate(main):
        out.append(m)
        if start<=i<end:
            tgt=(i-start+1)*len(fill)//n
            while k<tgt: out.append(fill[k]); k+=1
    out+=fill[k:]
    return out
```

```python
from emit import *
from gen import *

ACC1 = 16
HB = 80
XB = 92
SA = 108
QQ = 116
UT = 118
SEL = 122
AX, BX, SC, RS = 126, 128, 130, 132
RES = 134
CF = 142
DF = 206
MT = 238
vXS0, vXS1, vAR0, vAR1 = 12, 13, 14, 15
vAW0 = vDH
vBD0, vBD1, vBDH, vAW1, vLN, vPF, vOA = 108, 109, 110, 111, 112, 113, 114
L_A0 = 20480
sCDB, sPA, sPCc, sPD, sPI, sF3, sHB, sLO, sHI = 74, 75, 78, 80, 81, 90, 91, 94, 95

COST = {"trans": 8.3, "v8": 5.2, "v4": 4.3}
def cost(t):
    c = 0.0
    for l in t.split("\n"):
        l = l.strip()
        if not l or l.startswith("WAIT") or l.endswith(":"): continue
        op = l.split()[0]
        if op.startswith("v_mfma"): c += 8
        elif op in TRANS: c += 8.3
        elif op.startswith("v_"):
            c += 5.2 if (op in ("v_fma_f32", "v_cvt_pk_bf16_f32", "v_fmaak_f32", "v_perm_b32") or op.startswith("v_dot") or "0x" in l) else 4.3
        elif op.startswith("s_"): c += 1
        else: c += 2
    return c
def wfill(main, items, start, budget=24.0, stop=None):
    out = []; k = 0; acc = 0.0
    for i, m in enumerate(main):
        out.append(m)
        if i >= start and (stop is None or i < stop):
            acc += budget * (2 if "32x32x2_f32" in m else (0.34 if "16x16x32" in m else 1))
            while k < len(items) and cost(items[k]) <= acc + 1.0:
                acc -= cost(items[k]); out[-1] += "\n" + items[k]; k += 1
    return out, items[k:]
def attach(main, i, text, before=False):
    if isinstance(text, list): text = "\n".join(text)
    main[i] = (text + "\n" + main[i]) if before else (main[i] + "\n" + text)

def mlp(s):
    e = s.e; o = s.o
    acc1 = lambda n, T: ACC1 + 32*n + 16*T
    e(f"""s_mul_i32 s{sCDB}, s{sW}, {64*896 - 128}
    s_add_u32 s{sCDB}, s{sCDB}, s97
    s_add_u32 s{sCDB}, s{sCDB}, 512
    s_mul_i32 s{sHB}, s{sTB}, 57344
    s_add_u32 s{sHB}, s{sHB}, {WS_HT}
    s_mul_i32 s{sT0}, s{sTB}, {2*28*7168}
    s_add_u32 s{sT0}, s{sT0}, {WS_PART}
    s_lshl_b32 s{sT1}, s{sJ}, 2
    s_add_u32 s{sT1}, s{sT1}, s{sW}
    s_mul_i32 s{sT1}, s{sT1}, 7168
    s_add_u32 s{sPI}, s{sT0}, s{sT1}
    s_lshl_b32 s{sT1}, s{sJ}, 10
    s_add_u32 s{sT0}, s{sT0}, s{sT1}
    s_mul_i32 s{sT1}, s{sW}, 7168
    s_add_u32 s{sPD}, s{sT0}, s{sT1}
    s_add_u32 s{sPCc}, s{sPD}, s{sT1}
    s_lshl_b32 s{sT1}, s{sT1}, 2
    s_add_u32 s{sPA}, s{sT0}, s{sT1}
    s_add_u32 s{sPD}, s{sPD}, {24*7168}
    s_add_u32 s{sPCc}, s{sPCc}, {16*7168}
    s_lshl_b32 s{sT0}, s{sTB}, 3
    s_add_u32 s{sT0}, s{sT0}, s{sW}
    s_mul_i32 s{sT0}, s{sT0}, 7
    s_add_u32 s{sT0}, s{sT0}, s{sJ}
    s_lshl_b32 s{sT0}, s{sT0}, 7
    s_add_u32 s{sF3}, s{sT0}, {WS_F3}
    s_mov_b32 s{sLO}, 0x3f80
    s_mov_b32 s{sHI}, 0x3f800000""")
    e(f"""v_and_b32 v{MT}, 19, v{vL}
    v_bfe_u32 v{MT+1}, v{vL}, 2, 1
    v_lshl_or_b32 v{MT}, v{MT+1}, 3, v{MT}
    v_bfe_u32 v{MT+1}, v{vL}, 3, 1
    v_lshl_or_b32 v{MT}, v{MT+1}, 2, v{MT}
    v_lshlrev_b32 v{MT}, 1, v{MT}
    buffer_load_ushort v{AX}, v{MT}, {srd(SB1)}, s96 offen ;#b1
    buffer_load_ushort v{AX+1}, v{MT}, {srd(SB1)}, s96 offen offset:64 ;#b1""")
    e("WAIT vm:w1_27")
    e(s.tr_w(12, 0, lambda k, T: ("a", 8*(16+k) + 4*T)))
    s.set_dw(896)
    vC0, vC1, vD0, vD1, vP2 = MT+2, MT+3, MT+4, MT+5, MT+6
    e(f"""v_lshrrev_b32 v{MT}, 4, v{vL}
    v_lshrrev_b32 v{MT+1}, 2, v{vL}
    v_xor_b32 v{MT}, v{MT}, v{MT+1}
    v_and_b32 v{MT}, 1, v{MT}
    v_cmp_eq_u32 vcc, 0, v{MT}
    v_mov_b32 v{MT}, 0x3f803f80
    v_cndmask_b32 v{SEL}, 0, v{MT}, vcc
    v_mov_b32 v{SEL+1}, v{SEL}
    v_mov_b32 v{SEL+2}, v{SEL}
    v_mov_b32 v{SEL+3}, v{SEL}
    v_lshrrev_b32 v{MT}, 2, v{vL}
    v_and_b32 v{MT}, 4, v{MT}
    v_xor_b32 v{MT}, v{MT}, v{vL}
    v_lshlrev_b32 v{vDH}, 4, v{MT}
    s_lshl_b32 s{sT0}, s{sW}, 11
    v_add_u32 v{vXS0}, s{sT0}, v{vTRB0}
    v_add_u32 v{vXS1}, s{sT0}, v{vTRB1}
    s_lshr_b32 s{sT0}, s{sW}, 1
    s_lshl_b32 s{sT0}, s{sT0}, 13
    s_add_u32 s{sT0}, s{sT0}, {L_STG}
    s_sub_u32 s{sT0}, s{sT0}, s{sSTG}
    s_and_b32 s{sT1}, s{sW}, 1
    s_lshl_b32 s{sT1}, s{sT1}, 6
    v_xor_b32 v{vC0}, s{sT1}, v{vTRA0}
    v_add_u32 v{vC0}, s{sT0}, v{vC0}
    v_add_u32 v{vC1}, {2*STGS}, v{vC0}
    v_lshrrev_b32 v{MT}, 5, v{vL}
    v_lshlrev_b32 v{vD0}, 11, v{MT}
    v_bfe_u32 v{MT}, v{vL}, 4, 1
    v_lshl_or_b32 v{vD0}, v{MT}, 10, v{vD0}
    v_bfe_u32 v{MT}, v{vL}, 2, 2
    v_lshl_or_b32 v{vD0}, v{MT}, 7, v{vD0}
    v_and_b32 v{MT}, 3, v{vL}
    v_lshlrev_b32 v{MT}, 3, v{MT}
    s_lshl_b32 s{sT0}, s{sW}, 5
    v_add_u32 v{MT}, s{sT0}, v{MT}
    v_bfe_u32 v{MT+1}, v{vL}, 3, 1
    v_lshlrev_b32 v{MT+1}, 6, v{MT+1}
    v_xor_b32 v{MT}, v{MT}, v{MT+1}
    v_add_u32 v{vD0}, v{vD0}, v{MT}
    v_add_u32 v{vD0}, {L_STG + 16384}, v{vD0}
    v_add_u32 v{vD1}, {2*STGS}, v{vD0}""")
    for q in range(4):
        e(f"""v_add_u32 v{vP2+q}, {64*q}, v{vL}
        v_min_u32 v{vP2+q}, 223, v{vP2+q}
        v_mul_u32_u24 v{vP2+q}, {o['f2s']}, v{vP2+q}
        v_add_u32 v{vP2+q}, {WS_F2}, v{vP2+q}""")
    s2 = []
    for L in range(3): s2 += s.dma_w(2, 0, 4, 8192*L, base=f"s{sCDB}", extra=128*L, tag="cd")
    npre = o.get("s2pre", 0)
    e("s_waitcnt lgkmcnt(0)")
    e(s2[:npre])
    e(f"""WAIT vm:h
    s_barrier
    s_mul_i32 s{sT0}, s2, {o['f2s']}
    s_add_u32 s{sT0}, s{sT0}, {WS_F2}
    v_mov_b32 v{MT}, s{sT}
    v_mov_b32 v{MT+1}, s{sT0}
    v_cmp_eq_u32 vcc, {64*o.get('flagw', 0)}, v0
    s_and_saveexec_b64 s[{sEX}:{sEX+1}], vcc
    buffer_store_dword v{MT}, v{MT+1}, {srd(SWS)}, 0 offen sc1 ;#f2
    s_mov_b64 exec, s[{sEX}:{sEX+1}]""")
    s.ts()
    CS = HB
    cs = []
    for k in range(28):
        for T in range(2):
            cs.append(f"v_mfma_f32_16x16x32_bf16 {v(CS+4*T,4)}, {v(SEL,4)}, {ar(8*k+4*T,4)}, {'0' if k == 0 else v(CS+4*T,4)}")
    e(interleave(cs, s2[npre:], 0, 56) if o.get("s2mix", True) else s2[npre:] + cs)
    e(f"""WAIT vm:b1
    v_cmp_gt_u32 vcc, 32, v{vL}
    v_lshlrev_b32 v{AX}, 16, v{AX}
    v_lshlrev_b32 v{AX+1}, 16, v{AX+1}
    v_mov_b32 v{QQ}, 0
    v_mov_b32 v{QQ+1}, 0
    v_cndmask_b32 v{AX}, v{AX}, v{CS}, vcc
    v_cndmask_b32 v{AX+1}, v{AX+1}, v{CS+4}, vcc""")
    PL = MT + 10
    e(f"""s_cmp_lg_u32 s{sW}, {o.get('pollw', 3)}
    s_cbranch_scc1 Lp2x
    s_mov_b32 s{sCNT}, {o['spin']}
    Lp2:""")
    for q in range(4): e(f"buffer_load_dword v{PL+q}, v{vP2+q}, {srd(SWS)}, 0 offen sc1")
    e(f"s_sub_u32 s{sCNT}, s{sCNT}, 1\ns_cbranch_scc1 Lp2x\ns_waitcnt vmcnt(0)")
    e(s.tagcheck([PL+q for q in range(4)], MT))
    e("s_cbranch_vccnz Lp2\nLp2x:\ns_waitcnt vmcnt(0)\ns_barrier")
    s.ts()
    e(f"s_lshl_b32 m0, s{sW}, 11\ns_add_u32 s{sOFF}, s{sHB}, m0")
    for i in range(2): e(f"buffer_load_dwordx4 v{vDH}, {srd(SWS)}, s{sOFF} offen offset:{1024*i} lds ;#hg0")
    e(f"s_lshl_b32 s{sT0}, s{sW}, 12")
    for g in range(1, 4):
        e(f"s_add_u32 m0, s{sT0}, {8192 + 16384*(g-1)}\ns_add_u32 s{sOFF}, s{sHB}, m0")
        for i in range(4): e(f"buffer_load_dwordx4 v{vDH}, {srd(SWS)}, s{sOFF} offen offset:{1024*i} lds ;#hg{g}")
    for k in range(16):
        for sec in range(2):
            e(f"ds_read_b64_tr_b16 {v(CF+4*k+2*sec,2)}, v{vC0 if k < 8 else vC1} offset:{((k>>2)&1)*STGS + (k&3)*2048 + 512*sec}")
    for u in range(8):
        for sec in range(2):
            e(f"ds_read_b64_tr_b16 {v(DF+4*u+2*sec,2)}, v{vD0 if u < 4 else vD1} offset:{((u>>1)&1)*STGS + (u&1)*4096 + 512*sec}")
    e(f"""v_lshlrev_b32 v{vT}, 4, v{vL}
    v_add_u32 v{vAR0}, {L_STG + L_A0}, v{vT}
    v_add_u32 v{vAR1}, {2*STGS}, v{vAR0}
    s_add_u32 s{sT0}, s{sSTG}, {L_A0}
    v_add_u32 v{vAW0}, s{sT0}, v{vT}
    s_waitcnt lgkmcnt(0)
    WAIT vm:hg0
    s_barrier""")
    s.ts()
    def hrd(n, k):
        return [f"ds_read_b64_tr_b16 {v(HB+4*((k+n)%3)+2*sec,2)}, v{vTRB0 if n == 0 else vTRB1} offset:{2048*k + 512*sec} ;#h{n}_{k}" for sec in range(2)]
    def g1(n, k, T):
        return f"v_mfma_f32_32x32x16_bf16 {v(acc1(n,T),16)}, {ar(8*k+4*T,4)}, {v(HB+4*((k+n)%3),4)}, {'0' if k == 0 else v(acc1(n,T),16)}"
    def xrd(i):
        return [f"ds_read_b64_tr_b16 {v(XB+8*(i&1)+4*n+2*sec,2)}, v{vXS0 if n == 0 else vXS1} offset:{8192*i + 512*sec} ;#x{i}" for n in range(2) for sec in range(2)]
    def xst(i):
        out = []
        for n in range(2):
            b = XB + 8*(i&1) + 4*n
            out.append((f"WAIT ds:x{i}\n" if n == 0 else "") + f"v_mfma_f32_16x16x32_bf16 {v(SA+4*n,4)}, {v(SEL,4)}, {v(b,4)}, {'0' if i == 0 else v(SA+4*n,4)}")
        for d in range(4):
            for n in range(2):
                b = XB + 8*(i&1) + 4*n
                out += [f"v_lshlrev_b32 v{UT+2*n}, 16, v{b+d}", f"v_and_b32 v{UT+2*n+1}, s{sMASK}, v{b+d}"]
            for h in range(2):
                for n in range(2): out.append(f"v_fmac_f32 v{QQ+n}, v{UT+2*n+h}, v{UT+2*n+h}")
        return out
    e(hrd(0, 0) + hrd(0, 1) + xrd(0))
    m = []
    for k in range(28):
        for T in range(2):
            t = g1(0, k, T)
            if T == 0:
                t = f"WAIT ds:h0_{k}\n" + t
                kk = k + 2
                pre = []
                if kk in (4, 12, 20): pre = [f"WAIT vm:hg{(kk+4)//8}", "s_barrier"]
                t += "\n" + "\n".join(pre + (hrd(0, kk) if kk < 28 else hrd(1, kk - 28)))
            m.append(t)
    rd_at = {1: 5, 2: 12, 3: 21, 4: 28, 5: 37, 6: 41}
    for i, p in rd_at.items(): attach(m, p, xrd(i))
    st_at = {0: 0, 1: 7, 2: 14, 3: 23, 4: 30, 5: 39, 6: 45}
    lim = {0: 7, 1: 14, 2: 23, 3: 30, 4: 39, 5: 45, 6: 51}
    for i in range(7):
        m, rest = wfill(m, xst(i), st_at[i], 25.0, lim[i])
        if rest: attach(m, lim[i] - 1, rest)
    attach(m, 38, [f"s_lshl_b32 s{sT0}, s{sJ}, 13", f"v_add_u32 v{vT}, s{sT0}, v{vXS0}"] +
           [f"ds_read_b64_tr_b16 {v(RES+2*sec,2)}, v{vT} offset:{512*sec} ;#res" for sec in range(2)] +
           [f"v_xor_b32 v{vT}, 64, v{vT}"] +
           [f"ds_read_b64_tr_b16 {v(RES+4+2*sec,2)}, v{vT} offset:{512*sec} ;#res" for sec in range(2)])
    s3 = s.dma_w(2, 0, 10, 0)
    a0, a1 = o.get("s3span", (22, 56))
    n3 = o.get("s3n", 20)
    for i in range(n3): attach(m, a0 + i*(a1 - a0)//n3, s3[i])
    s3rest = s3[n3:]
    vSX = vXS1
    attach(m, 51, f"""v_permlane32_swap_b32 v{QQ}, v{QQ+1}
    v_permlane32_swap_b32 v{SA}, v{SA+4}
    v_add_f32 v{SA+1}, v{QQ}, v{QQ+1}
    s_lshl_b32 s{sT0}, s{sW}, 3
    s_add_u32 s{sT0}, s{sT0}, {L_SX}
    v_lshl_add_u32 v{vSX}, v{vL}, 5, s{sT0}
    ds_write_b64 v{vSX}, {v(SA,2)} ;#sxw""")
    attach(m, 53, f"""v_lshlrev_b32 v{vSX}, 5, v{vL}
    v_add_u32 v{vSX}, {L_SX}, v{vSX}
    WAIT ds:sxw
    s_barrier
    ds_read_b128 {v(XB,4)}, v{vSX} ;#sxr
    ds_read_b128 {v(XB+4,4)}, v{vSX} offset:16 ;#sxr""")
    e(m)
    s.ts()
    def mish(n, wr):
        out = []
        for T in range(2):
            for g4 in range(4):
                r = [acc1(n, T) + 4*g4 + i for i in range(4)]
                a = [MT + 8*(g4&1) + i for i in range(4)]; b = [MT + 8*(g4&1) + 4 + i for i in range(4)]
                out += [f"v_mul_f32 v{a[i]}, v{SC+n}, v{r[i]}" for i in range(4)]
                out += [f"v_exp_f32 v{a[i]}, v{a[i]}" for i in range(4)]
                out += [f"v_fmaak_f32 v{b[i]}, -0.5, v{a[i]}, 0xbf800000" for i in range(4)]
                out += [f"v_fmaak_f32 v{a[i]}, v{a[i]}, v{b[i]}, 0xbf800000" for i in range(4)]
                out += [f"v_rcp_f32 v{a[i]}, v{a[i]}" for i in range(4)]
                out += [f"v_fmac_f32 v{r[i]}, v{r[i]}, v{a[i]}" for i in range(4)]
                q = acc1(n, T) + 8*(g4>>1) + 2*(g4&1)
                out += [f"v_cvt_pk_bf16_f32 v{q+i}, v{r[2*i]}, v{r[2*i+1]}" for i in range(2)]
                if g4 & 1: out.append(f"ds_write_b128 v{wr}, {v(acc1(n,T)+8*(g4>>1),4)} offset:{1024*(2*T+(g4>>1))} ;#aw{n}")
        return out
    fin = f"""WAIT ds:sxr
    v_add_f32 v{XB}, v{XB}, v{XB+2}
    v_add_f32 v{XB+1}, v{XB+1}, v{XB+3}
    v_add_f32 v{XB+4}, v{XB+4}, v{XB+6}
    v_add_f32 v{XB+5}, v{XB+5}, v{XB+7}
    v_add_f32 v{XB}, v{XB}, v{XB+4}
    v_add_f32 v{XB+1}, v{XB+1}, v{XB+5}
    v_mul_f32 v{BX}, {-1/448!r}, v{XB}
    v_mul_f32 v{XB+1}, {1/448!r}, v{XB+1}
    v_fma_f32 v{XB+1}, -v{BX}, v{BX}, v{XB+1}
    v_max_f32 v{XB+1}, 0, v{XB+1}
    v_add_f32 v{XB+1}, 0x3727c5ac, v{XB+1}
    v_rsq_f32 v{RS}, v{XB+1}
    v_mul_f32 v{BX+1}, v{XB+1}, v{RS}
    v_mov_b32 v{RS+1}, v{RS}
    v_permlane32_swap_b32 v{BX}, v{BX+1}
    v_permlane32_swap_b32 v{RS}, v{RS+1}
    v_mul_f32 v{SC}, 0x3fb8aa3b, v{RS}
    v_mul_f32 v{SC+1}, 0x3fb8aa3b, v{RS+1}""".split("\n")
    upd = lambda n, T: f"v_mfma_f32_32x32x2_f32 {v(acc1(n,T),16)}, v{AX+T}, v{BX+n}, {v(acc1(n,T),16)}"
    m = []
    for k in range(28):
        for T in range(2):
            t = g1(1, k, T)
            if T == 0:
                t = f"WAIT ds:h1_{k}\n" + t
                if k + 2 < 28: t += "\n" + "\n".join(hrd(1, k + 2))
            m.append(t)
    m, rest = wfill(m, fin, 0, 30.0, 3); attach(m, 2, rest)
    m = m[:3] + [upd(0, 0), upd(0, 1), m[3], upd(1, 0), m[4], upd(1, 1)] + m[5:]
    sl = lambda k, T: {3: 5, 4: 7}.get(2*k+T, 2*k+T if 2*k+T < 3 else 2*k+T+4)
    adr = f"""v_lshlrev_b32 v{vLN}, 4, v{vL}
    s_lshl_b32 s{sT0}, s{sW}, 12
    v_add_u32 v{vAW1}, s{sT0}, v{vLN}
    v_lshrrev_b32 v{vBDH}, 4, v{vL}
    v_lshlrev_b32 v{vBDH}, 9, v{vBDH}
    v_and_b32 v{vBD0}, 15, v{vL}
    v_lshl_or_b32 v{vBDH}, v{vBD0}, 4, v{vBDH}
    v_add_u32 v{vBD0}, {L_STG + L_A0}, v{vBDH}
    v_add_u32 v{vBD1}, {2*STGS}, v{vBD0}""".split("\n")
    m, rest = wfill(m, adr, 3, 24.0, 5); attach(m, 4, rest)
    for i, x in enumerate(s3rest): attach(m, 2 + 2*i, x)
    s4 = s.dma_w(2, 10, 6, 0)
    ab0 = o.get("ab0", 5)
    pos = 0
    for k in range(10):
        pos = max(sl(k, 1), sl(ab0, 0) + 2*k)
        attach(m, pos, [f"WAIT vm:w2_{k}"] + s.tr_w(1, 2048*k, lambda kk, T: ("a", 8*k + 4*T), tag=f"ab{k}"))
    p4 = sl(ab0, 0) + 8
    for i, x in enumerate(s4):
        attach(m, p4 + 2*i, ([f"WAIT ds:ab{2*(i//4)+1}"] if i % 4 == 0 else []) + [x])
    hold = o.get("hold", 4)
    ard = lambda n, k: f"ds_read_b128 {ar(128+64*n+4*k,4)}, v{(vAR0 if k < 8 else vAR1) if n == 0 else vLN} offset:{(((k>>2)&1)*STGS + (k&3)*1024) if n == 0 else 1024*k} ;#ar{n}_{k}"
    m, rest = wfill(m, mish(0, vAW0), 5, o.get("mb", 24.0), 60 - hold)
    attach(m, 59 - hold, rest + ["WAIT ds:aw0", "s_barrier"])
    for k in range(16): attach(m, 59 - hold + k*hold//16, ard(0, k))
    e(m)
    s.ts()
    P = [ACC1, ACC1 + 16]; DA = HB
    def st(n, reg, base, i, tag):
        return f"s_add_u32 s{sOFF}, s{base}, {(28*n + i)*7168}\nbuffer_store_dwordx4 {v(reg,4)}, v{vLN}, {srd(SWS)}, s{sOFF} offen {o.get('pst', 'sc1')} ;#{tag}"
    def conv(n, p, base):
        out = []
        for h in range(2):
            out += [f"v_cvt_pk_bf16_f32 v{p+8*h+i}, v{p+8*h+2*i}, v{p+8*h+2*i+1}" for i in range(4)]
            out.append(st(n, p+8*h, base, h, f"p{n}"))
        return out
    def convD(n):
        return [f"v_cvt_pk_bf16_f32 v{DA}, v{DA}, v{DA+1}", f"v_cvt_pk_bf16_f32 v{DA+1}, v{DA+2}, v{DA+3}",
                f"v_cvt_pk_bf16_f32 v{DA+2}, v{DA+4}, v{DA+5}", f"v_cvt_pk_bf16_f32 v{DA+3}, v{DA+6}, v{DA+7}",
                f"v_permlane16_swap_b32 v{DA}, v{DA+2}", f"v_permlane16_swap_b32 v{DA+1}, v{DA+3}", st(n, DA, sPD, 0, f"p{n}")]
    def brd(n, u):
        b = (vBD0 if u < 4 else vBD1) if n == 0 else vBDH
        off = (((u>>1)&1)*STGS + (u&1)*2048) if n == 0 else 2048*u
        return [f"ds_read_b128 {v(XB+8*(u&1)+4*h,4)}, v{b} offset:{off + 256*h} ;#b{n}_{u}" for h in range(2)]
    def flag(n):
        return f"""WAIT vm:p{n}
        v_mov_b32 v{MT+16}, s{sT}
        s_add_u32 s{sOFF}, s{sF3}, {n*28*128}
        s_mov_b64 exec, 1
        buffer_store_dword v{MT+16}, off, {srd(SWS)}, s{sOFF} {o.get('pst', 'sc1')} ;#f3
        s_mov_b64 exec, -1"""
    pend = []
    for n in range(2):
        m = []
        chains = [("C", lambda k: v(CF+4*k,4), sPCc), ("A", lambda k: ar(8*k,4), sPA), ("B", lambda k: ar(8*k+4,4), sPA)]
        for c, (nm, A, base) in enumerate(chains):
            p = P[(c + n) & 1]
            for k in range(16):
                t = f"v_mfma_f32_32x32x16_bf16 {v(p,16)}, {A(k)}, {ar(128+64*n+4*k,4)}, {'0' if k == 0 else v(p,16)}"
                if c == 0: t = f"WAIT ds:ar{n}_{k}\n" + t
                if c == 1 and n == 0 and k >= 10: t = f"WAIT ds:ab{k}\n" + t
                m.append(t)
        for u in range(8):
            for h in range(2):
                t = f"v_mfma_f32_16x16x32_bf16 {v(DA+4*h,4)}, {v(DF+4*u,4)}, {v(XB+8*(u&1)+4*h,4)}, {'0' if u == 0 else v(DA+4*h,4)}"
                if h == 0: t = f"WAIT ds:b{n}_{u}\n" + t
                if h == 1 and u + 2 < 8: t += "\n" + "\n".join(brd(n, u + 2))
                m.append(t)
        attach(m, 44, brd(n, 0) + brd(n, 1))
        def put(at, items):
            nonlocal m
            m, rest = wfill(m, items, at, 12.0 if n == 0 else 24.0, at + 8)
            if rest: attach(m, at + 7, rest)
        if pend: put(2, pend)
        put(18, conv(n, P[n & 1], sPCc))
        put(34, [x.replace("XX", "0") for x in conv(n, P[(1 + n) & 1], sPA)])
        cb = []
        for h in range(2):
            pb = P[n & 1]
            cb += [f"v_cvt_pk_bf16_f32 v{pb+8*h+i}, v{pb+8*h+2*i}, v{pb+8*h+2*i+1}" for i in range(4)]
            cb.append(st(n, pb+8*h, sPA, 2 + h, f"p{n}"))
        for i, x in enumerate(cb): attach(m, min(51 + i, 63), x)
        if n == 0:
            for k in range(10, 16): attach(m, o.get("ab1", 4) + 2*(k-10), [f"WAIT vm:w2_{k}"] + s.tr_w(1, 2048*(k-10), lambda kk, T: ("a", 8*k + 4*T), tag=f"ab{k}"))
            m, rest = wfill(m, mish(1, vAW1), 1, o.get("mb3", 22.0), 48)
            at = 47
            attach(m, at, rest + ["WAIT ds:aw1", "s_barrier"])
            for k in range(16): attach(m, 48 + k, ard(1, k))
            pend = convD(0)
        else:
            attach(m, o.get("f0at", 40), flag(0))
        e(m)
        s.ts()
    e(convD(1))
    e(f"""s_sub_u32 s{sT0}, s{sJ}, 4
    s_lshl_b32 s{sT0}, s{sT0}, 1
    s_lshr_b32 s{sT1}, s{sW}, 1
    s_add_u32 s{sT0}, s{sT0}, s{sT1}
    s_cmp_lt_u32 s{sJ}, 4
    s_cselect_b32 s{sT0}, s{sJ}, s{sT0}
    s_cmp_eq_u32 s{sJ}, 6
    s_cselect_b32 s{sT0}, s{sW}, s{sT0}
    s_lshl_b32 s{sT1}, s{sTB}, 3
    s_add_u32 s{sT0}, s{sT0}, s{sT1}
    s_mul_i32 s{sT0}, s{sT0}, {7*128}
    s_add_u32 s{sT0}, s{sT0}, {WS_F3}
    v_min_u32 v{vPF}, 6, v{vL}
    v_lshlrev_b32 v{vPF}, 7, v{vPF}
    v_add_u32 v{vPF}, s{sT0}, v{vPF}
    v_and_b32 v{vOA}, 31, v{vL}
    v_mul_u32_u24 v{vOA}, 896, v{vOA}
    v_lshrrev_b32 v{vT}, 5, v{vL}
    v_lshl_add_u32 v{vOA}, v{vT}, 4, v{vOA}
    s_mul_i32 s{sT2}, s{sTB}, 57344
    s_lshl_b32 s{sT0}, s{sJ}, 7
    s_add_u32 s{sT2}, s{sT2}, s{sT0}
    s_lshl_b32 s{sT0}, s{sW}, 5
    s_add_u32 s{sT2}, s{sT2}, s{sT0}""")
    PT = [CF, CF + 28]; SM = CF + 56
    ld = o.get("pld", "sc1")
    def poll(n):
        e(f"""s_mov_b32 s{sCNT}, {o['spin']}
        buffer_load_dword v{vT}, v{vPF}, {srd(SWS)}, 0 offen offset:{n*28*128} sc1
        s_waitcnt vmcnt(0)""")
        if n == 0: e(flag(1))
        e(f"""v_cmp_ne_u32 vcc, s{sT}, v{vT}
        s_cbranch_vccz Lp3x{n}
        Lp3{n}:
        buffer_load_dword v{vT}, v{vPF}, {srd(SWS)}, 0 offen offset:{n*28*128} sc1
        s_sub_u32 s{sCNT}, s{sCNT}, 1
        s_cbranch_scc1 Lp3x{n}
        s_waitcnt vmcnt(0)
        v_cmp_ne_u32 vcc, s{sT}, v{vT}
        s_cbranch_vccnz Lp3{n}
        Lp3x{n}:
        s_add_u32 s{sT0}, s{sPI}, {n*28*7168}
        s_add_u32 s{sT1}, s{sT0}, 4096""")
        for j in range(7):
            e(f"buffer_load_dwordx4 {v(PT[n]+4*j,4)}, v{vLN}, {srd(SWS)}, s{sT0 if j < 4 else sT1} offen offset:{1024*(j%4)} {ld} ;#q{n}_{j}")
    def red(n):
        for j in range(7):
            e(f"WAIT vm:q{n}_{j}")
            for d in range(4):
                for h in range(2):
                    e(f"v_dot2_f32_bf16 v{SM+2*d+h}, v{PT[n]+4*j+d}, s{sHI if h else sLO}, {'0' if j == 0 else f'v{SM+2*d+h}'}")
        for d in range(8): e(f"v_mul_f32 v{SM+d}, v{RS+n}, v{SM+d}")
        for d in range(4):
            for h in range(2): e(f"v_dot2_f32_bf16 v{SM+2*d+h}, v{RES+4*n+d}, s{sHI if h else sLO}, v{SM+2*d+h}")
        for d in range(4): e(f"v_cvt_pk_bf16_f32 v{SM+8+4*n+d}, v{SM+2*d}, v{SM+2*d+1}")
        e(f"""s_add_u32 s{sOFF}, s{sT2}, {n*32*896}
        buffer_store_dwordx4 {v(SM+8+4*n,4)}, v{vOA}, {srd(SOUT)}, s{sOFF} offen {o.get('ost', '')}""")
    poll(0)
    s.ts()
    red(0)
    s.ts()
    poll(1)
    s.ts()
    red(1)
```

```python
import sys
from emit import *
K = "sequential_preLN__ssm_conv_h3__dense_activation_mish__prompt_kernel"

WS_E = 0
WS_F2 = 0x1000
WS_F3 = 0x10000
WS_ST = 0x50000
WS_X1 = 0x100000
WS_HT = 0x700000
WS_PART = 0x900000
WS_TS = 0x1600000
WS_SIZE = 0x1700000
TAGC = 0x9E3779B1

L_G = 0; GSTR = 4160
L_R = 33280; RSTR = 4608
L_X = 42496
L_EX = 42496
L_R1X = 25088
L_STG = 59392; STGS = 24576
L_SX = 157696
LDS_BYTES = 159744

SX, SK, SV, SF, SW1, SW2, SWS, SOUT, SB1, SSK = 32, 36, 40, 44, 48, 52, 56, 60, 64, 68
sT, sW, sG, sR, sTB, sJ = 72, 73, 74, 75, 76, 77
sD, sMASK, sPL, sPH = 78, 79, 80, 81
sM0, sOFF, sCNT, sT0, sT1, sT2, sT3 = 82, 83, 84, 85, 86, 87, 88
sSTG = 89
sDP = 90
sEX = 92
sPC = 94
def srd(b): return f"s[{b}:{b+3}]"
def v(a, n=1): return f"v{a}" if n == 1 else f"v[{a}:{a+n-1}]"
def ar(a, n=1): return f"a{a}" if n == 1 else f"a[{a}:{a+n-1}]"
vL, vTRA0, vTRA1, vTRB0, vTRB1 = 1, 2, 3, 4, 5
vDW = 6
vDH = 10
vT = 11

class G:
    def __init__(s, **o):
        s.o = dict(ts=False, stop=None, r1_early=True, spin=200000, f2s=128, nt=True, prefetch=True, r2=True, bbts=False, r2span=(1,2), mp='tb', r2all=True)
        s.o.update(o)
        s.e = E(); s.nts = 0
    def ts(s):
        if s.o["ts"]:
            s.ncall = getattr(s, "ncall", 0) + 1
            if s.ncall in s.o.get("tsskip", ()): return
            k = s.nts; s.nts += 1
            assert k < 14
            s.e(f"s_memrealtime s[{4+2*k}:{5+2*k}]")
    def dma_w(s, which, k0, n, lds, ldsreg=None, base=None, extra=0, tag=None):
        stride = 3584 if which == 1 else 896
        if base is None: base = "s96" if which == 1 else "s97"
        S = SW1 if which == 1 else SW2
        out = []
        for g in range(n // 2):
            ks = k0 + 2 * g
            reg = f"s{sSTG}" if ldsreg is None else ldsreg
            pre = [f"s_add_u32 m0, {reg}, {lds + 4096 * g}", f"s_add_u32 s{sOFF}, {base}, {ks * 16 * stride + extra}"]
            for i in range(4):
                ins = f"buffer_load_dwordx4 v{vDW+i}, {srd(S)}, s{sOFF} offen offset:{1024*i} lds"
                out.append("\n".join(pre + [ins]) if i == 0 else ins)
        return out
    def tr_w(s, n, lds, dst, a0=vTRA0, a1=vTRA1, tag="trw"):
        out = []
        for k in range(n):
            for T in range(2):
                for sec in range(2):
                    kind, r = dst(k, T)
                    reg = f"{kind}[{r+2*sec}:{r+2*sec+1}]"
                    out.append(f"ds_read_b64_tr_b16 {reg}, v{a0 if T == 0 else a1} offset:{lds + 2048*k + 512*sec} ;#{tag}")
        return out
    def set_dw(s, stride):
        e = s.e
        e(f"""v_lshrrev_b32 v{vT}, 3, v{vL}
        v_lshrrev_b32 v{vT+1}, 2, v{vL}
        v_and_b32 v{vT+1}, 4, v{vT+1}
        v_and_b32 v{vT+2}, 7, v{vL}
        v_xor_b32 v{vT+1}, v{vT+1}, v{vT+2}
        v_lshlrev_b32 v{vT+1}, 4, v{vT+1}
        v_mul_u32_u24 v{vT}, {stride}, v{vT}
        v_add_u32 v{vDW}, v{vT}, v{vT+1}""")
        for i in range(1, 4): e(f"v_add_u32 v{vDW+i}, {i*(8*stride-1024)}, v{vDW}")
    def tagcheck(s, regs, acc):
        out = [f"v_xor_b32 v{acc}, s{sT}, v{regs[0]}"]
        for r in regs[1:]: out.append(f"v_bitop3_b32 v{acc}, v{acc}, v{r}, s{sT} bitop3:0xf6")
        out.append(f"v_cmp_ne_u32 vcc, 0, v{acc}")
        return out
    def prologue(s):
        e = s.e; o = s.o
        if o["ts"]: e("s_memrealtime s[98:99]")
        e(f"""s_cmp_ge_u32 s2, 256
        s_cbranch_scc1 Lend
        s_load_dwordx2 s[{SWS}:{SWS+1}], s[0:1], 96
        s_load_dwordx2 s[{SK}:{SK+1}], s[0:1], 8
        s_load_dwordx2 s[{SV}:{SV+1}], s[0:1], 16
        s_load_dwordx2 s[{SX}:{SX+1}], s[0:1], 0
        s_load_dwordx2 s[{SSK}:{SSK+1}], s[0:1], 24
        s_load_dwordx2 s[{SF}:{SF+1}], s[0:1], 32
        s_load_dwordx2 s[{sDP}:{sDP+1}], s[0:1], 40
        s_load_dwordx2 s[{SW1}:{SW1+1}], s[0:1], 56
        s_load_dwordx2 s[{SB1}:{SB1+1}], s[0:1], 64
        s_load_dwordx2 s[{SW2}:{SW2+1}], s[0:1], 72
        s_load_dwordx2 s[{SOUT}:{SOUT+1}], s[0:1], 80""")
        if o["prefetch"]:
            e(f"""s_getpc_b64 s[{sPC}:{sPC+1}]
            Lpc:
            v_lshlrev_b32 v{vT}, 7, v0
            v_min_u32 v{vT}, Lend-Lpc, v{vT}
            global_load_dword v{vT+4}, v{vT}, s[{sPC}:{sPC+1}] ;#pf""")
        for b, n in ((SK, 1835008), (SV, 1835008), (SX, 1835008), (SSK, 3584), (SF, 4096), (SW1, 1605632), (SB1, 3584), (SW2, 1605632), (SOUT, 1835008), (SWS, WS_SIZE)):
            e(f"s_mov_b32 s{b+2}, {n}\ns_mov_b32 s{b+3}, 0x20000")
        e(f"""v_lshrrev_b32 v{vT}, 6, v0
        v_and_b32 v{vL}, 63, v0
        v_readfirstlane_b32 s{sW}, v{vT}
        s_mov_b32 s{sMASK}, 0xffff0000
        s_mov_b32 s{sPL}, 0x05040100
        s_mov_b32 s{sPH}, 0x07060302
        s_lshr_b32 s{sG}, s2, 5
        s_and_b32 s{sR}, s2, 31
        s_cmp_ge_u32 s2, 224
        s_cbranch_scc1 Lhelper""")
    def p0(s):
        e = s.e; o = s.o
        nt = " nt" if o["nt"] else ""
        vA, vA5, vKm, vS = 16, 17, 18, 19
        KR, VR, XR, SKR = 20, 31, 39, 48
        FR = 160
        vFa, vFb, vFc = 180, 181, 182
        e(f"""s_mul_i32 s{sT0}, s{sR}, {64*896}
        s_lshl_b32 s{sT1}, s{sG}, 7
        s_add_u32 s{sT0}, s{sT0}, s{sT1}
        v_lshrrev_b32 v{vT}, 5, v0
        v_and_b32 v{vT+1}, 31, v0
        v_mul_u32_u24 v{vA}, {8*896}, v{vT}
        v_lshl_add_u32 v{vA}, v{vT+1}, 2, v{vA}
        v_add_u32 v{vA}, s{sT0}, v{vA}
        v_add_u32 v{vA5}, {5*896}, v{vA}
        v_subrev_u32 v{vKm}, {3*896}, v{vA}
        s_lshl_b32 s{sT1}, s{sG}, 9
        v_lshlrev_b32 v{vS}, 4, v{vT+1}
        v_add_u32 v{vS}, s{sT1}, v{vS}
        v_and_b32 v{vT+2}, 127, v0
        v_lshlrev_b32 v{vT+2}, 4, v{vT+2}
        v_subrev_u32 v{vFa}, 32, v{vT+2}
        v_subrev_u32 v{vFb}, 16, v{vT+2}
        v_add_u32 v{vFc}, 2016, v{vT+2}
        s_waitcnt lgkmcnt(0)""")
        e(f"s_load_dword s{sT}, s[{SWS}:{SWS+1}], {WS_E}")
        e(f"buffer_load_dwordx4 {v(SKR,4)}, v{vS}, {srd(SSK)}, 0 offen ;#sk")
        for i in range(11):
            a, off = (vKm, i) if i < 3 else ((vA, i-3) if i < 8 else (vA5, i-8))
            e(f"buffer_load_dword v{KR+i}, v{a}, {srd(SK)}, 0 offen offset:{896*off}{nt} ;#k")
        for S, R, tg in ((SV, VR, "v"), (SX, XR, "x")):
            for i in range(8):
                a, off = (vA, i) if i < 5 else (vA5, i-5)
                e(f"buffer_load_dword v{R+i}, v{a}, {srd(S)}, 0 offen offset:{896*off}{nt} ;#{tg}")
        e(f"""s_lshl_b32 s{sT0}, s2, 2
        s_load_dword s{sD}, s[{sDP}:{sDP+1}], s{sT0}
        s_lshr_b32 s{sT1}, s{sW}, 1
        s_lshl_b32 s{sT0}, s2, 1
        s_add_u32 s{sT0}, s{sT0}, s{sT1}
        s_lshl_b32 s{sT0}, s{sT0}, 12
        s_add_u32 s{SF}, s{SF}, s{sT0}
        s_addc_u32 s{SF+1}, s{SF+1}, 0""")
        e(f"""buffer_load_dwordx4 {v(FR,4)}, v{vFa}, {srd(SF)}, 0 offen{nt} ;#f
        buffer_load_dwordx2 {v(FR+4,2)}, v{vFb}, {srd(SF)}, 0 offen{nt} ;#f
        buffer_load_dwordx4 {v(FR+8,4)}, v{vFc}, {srd(SF)}, 0 offen{nt} ;#f
        buffer_load_dwordx2 {v(FR+12,2)}, v{vFc}, {srd(SF)}, 0 offen offset:16{nt} ;#f
        buffer_load_dwordx4 {v(FR+16,4)}, v{vFc}, {srd(SF)}, 0 offen offset:2048{nt} ;#f
        buffer_load_dwordx2 {v(FR+6,2)}, v{vFc}, {srd(SF)}, 0 offen offset:2064{nt} ;#f""")
        if o["mp"] == "tb":
            e(f"""s_lshr_b32 s{sT0}, s2, 3
            s_mul_i32 s{sT1}, s{sT0}, 37
            s_lshr_b32 s{sT1}, s{sT1}, 8
            s_mul_i32 s{sT2}, s{sT1}, 7
            s_sub_u32 s{sJ}, s{sT0}, s{sT2}
            s_and_b32 s{sT0}, s2, 7
            s_lshl_b32 s{sT0}, s{sT0}, 2
            s_add_u32 s{sTB}, s{sT0}, s{sT1}""")
        else:
            e(f"""s_lshr_b32 s{sT0}, s2, 3
            s_and_b32 s{sT1}, s2, 1
            s_mul_i32 s{sT1}, s{sT1}, 28
            s_add_u32 s{sT0}, s{sT0}, s{sT1}
            s_lshr_b32 s{sJ}, s{sT0}, 3
            s_and_b32 s{sT0}, s{sT0}, 7
            s_and_b32 s{sT1}, s2, 6
            s_lshl_b32 s{sT1}, s{sT1}, 2
            s_add_u32 s{sTB}, s{sT0}, s{sT1}""")
        e(f"""s_mul_i32 s{sSTG}, s{sW}, {STGS}
        s_add_u32 s{sSTG}, s{sSTG}, {L_STG}
        s_lshl_b32 s96, s{sJ}, 9
        s_lshl_b32 s{sT0}, s{sW}, 7
        s_add_u32 s96, s96, s{sT0}
        s_mul_i32 s97, s{sJ}, {256*896}
        s_add_u32 s97, s97, s{sT0}""")
        s.set_dw(3584)
        def r1():
            e(s.dma_w(1, 0, 12, 0))
            e(f"s_lshl_b32 s{sT3}, s{sW}, 13")
            e(s.dma_w(1, 12, 4, L_R1X, f"s{sT3}"))
        if o["r1_early"]: r1()
        e(f"""v_lshrrev_b32 v{vT}, 5, v{vL}
        v_bfe_u32 v{vT+1}, v{vL}, 2, 2
        v_lshl_add_u32 v{vT}, v{vT}, 3, v{vT+1}
        v_lshlrev_b32 v{vT}, 7, v{vT}
        v_lshrrev_b32 v{vT+1}, 1, v{vT+1}
        v_lshlrev_b32 v{vT+1}, 6, v{vT+1}
        v_bfe_u32 v{vT+2}, v{vL}, 4, 1
        v_lshl_or_b32 v{vT+1}, v{vT+2}, 5, v{vT+1}
        v_or_b32 v{vT}, v{vT}, v{vT+1}
        v_and_b32 v{vT+1}, 3, v{vL}
        v_lshl_or_b32 v{vTRB0}, v{vT+1}, 3, v{vT}
        v_xor_b32 v{vTRB1}, 64, v{vTRB0}
        v_and_b32 v{vT+1}, 1, v{vL}
        v_lshl_or_b32 v{vT}, v{vT+1}, 4, v{vT}
        v_bfe_u32 v{vT+1}, v{vL}, 1, 1
        v_lshl_or_b32 v{vT}, v{vT+1}, 3, v{vT}
        v_add_u32 v{vTRA0}, s{sSTG}, v{vT}
        v_xor_b32 v{vTRA1}, 64, v{vTRA0}""")
        vSW, vSR, vPUB = 183, 184, 185
        e(f"""v_and_b32 v{vT}, 31, v0
        v_mul_u32_u24 v{vT}, 784, v{vT}
        v_lshrrev_b32 v{vT+1}, 5, v0
        v_lshl_add_u32 v{vSW}, v{vT+1}, 4, v{vT}
        v_lshrrev_b32 v{vT}, 3, v0
        v_and_b32 v{vT+1}, 7, v0
        v_mul_u32_u24 v{vT+2}, 784, v{vT}
        v_lshl_add_u32 v{vSR}, v{vT+1}, 4, v{vT+2}
        v_mul_u32_u24 v{vT+2}, 24576, v{vT}
        v_lshl_add_u32 v{vPUB}, v{vT+1}, 4, v{vT+2}
        s_mul_i32 s{sT0}, s{sG}, {32*24576}
        s_mul_i32 s{sT1}, s{sR}, 768
        s_add_u32 s{sT0}, s{sT0}, s{sT1}
        s_add_u32 s{sT0}, s{sT0}, {WS_X1}
        v_add_u32 v{vPUB}, s{sT0}, v{vPUB}
        s_waitcnt lgkmcnt(0)
        s_add_u32 s{sT}, s{sT}, {TAGC}""")
        KF, VF, SKF, KS, OUT = 52, 74, 90, 98, 116
        for t in (0, 7, 8, 15, 16, 23): e(f"v_mov_b32 v{OUT+t}, s{sT}")
        e(f"v_mov_b32 v{OUT+17}, 0\nv_mov_b32 v{OUT+22}, 0")
        e("WAIT vm:sk")
        for jj, (a, b, hi) in enumerate(((0, 2, 0), (0, 2, 1), (1, 3, 0), (1, 3, 1))):
            for h, r in enumerate((a, b)):
                e(f"v_and_b32 v{SKF+2*jj+h}, s{sMASK}, v{SKR+r}" if hi else f"v_lshlrev_b32 v{SKF+2*jj+h}, 16, v{SKR+r}")
        e("WAIT vm:k")
        s.ts()
        for i in range(11):
            e(f"v_lshlrev_b32 v{KF+2*i}, 16, v{KR+i}\nv_and_b32 v{KF+2*i+1}, s{sMASK}, v{KR+i}")
        for jj in range(4):
            for i in range(8):
                kk = KF + 2 * (i + 3 - jj)
                if jj == 0: e(f"v_pk_mul_f32 {v(KS+2*i,2)}, {v(SKF,2)}, {v(kk,2)}")
                else: e(f"v_pk_fma_f32 {v(KS+2*i,2)}, {v(SKF+2*jj,2)}, {v(kk,2)}, {v(KS+2*i,2)}")
        e("WAIT vm:v")
        for i in range(8):
            e(f"v_lshlrev_b32 v{VF+2*i}, 16, v{VR+i}\nv_and_b32 v{VF+2*i+1}, s{sMASK}, v{VR+i}")
        for i in range(8): e(f"v_pk_mul_f32 {v(KS+2*i,2)}, {v(KS+2*i,2)}, {v(VF+2*i,2)}")
        for ch, o0 in ((0, 2), (1, 10)):
            for d in range(4): e(f"v_cvt_pk_bf16_f32 v{OUT+o0+d}, v{KS+2*(7-2*d)+ch}, v{KS+2*(6-2*d)+ch}")
        e("WAIT vm:x")
        s.ts()
        for d, r in enumerate((1, 6, 9, 14)): e(f"v_perm_b32 v{OUT+r}, v{XR+2*d+1}, v{XR+2*d}, s{sPH}")
        for j in range(4): e(f"ds_write_b128 v{vSW}, {v(OUT+4*j,4)} offset:{128*j} ;#sw")
        for d in range(4): e(f"v_perm_b32 v{OUT+18+d}, v{XR+2*d+1}, v{XR+2*d}, s{sPL}")
        for j in range(4, 6): e(f"ds_write_b128 v{vSW}, {v(OUT+4*j,4)} offset:{128*j} ;#sw")
        e("WAIT ds:sw\ns_barrier")
        PB_ = 20
        for j in range(6): e(f"ds_read_b128 {v(PB_+4*j,4)}, v{vSR} offset:{128*j} ;#sr{j}")
        for j in range(6): e(f"WAIT ds:sr{j}\nbuffer_store_dwordx4 {v(PB_+4*j,4)}, v{vPUB}, {srd(SWS)}, 0 offen offset:{128*j} sc1 ;#pub")
        s.ts()
        if not o["r1_early"]: r1()
        e("WAIT vm:w1_15")
        e(s.tr_w(12, 0, lambda k, T: ("a", 8*k + 4*T)))
        e(f"""s_mul_i32 s{sT0}, s{sW}, {STGS - 8192}
        s_add_u32 s{sT0}, s{sT0}, {L_STG - L_R1X}
        v_subrev_u32 v{vT}, s{sT0}, v{vTRA0}
        v_subrev_u32 v{vT+1}, s{sT0}, v{vTRA1}""")
        e(s.tr_w(4, 0, lambda k, T: ("a", 8*(12+k) + 4*T), vT, vT+1))
        e("s_waitcnt lgkmcnt(0)\ns_barrier")
        s.ts()
        vGW = 186; AL = 20
        e(f"""s_lshr_b32 s{sT1}, s{sW}, 1
        s_mul_i32 s{sT0}, s{sT1}, {4*GSTR}
        v_and_b32 v{vT+2}, 127, v0
        v_lshlrev_b32 v{vT+3}, 4, v{vT+2}
        v_add_u32 v{vGW}, s{sT0}, v{vT+3}
        s_lshl_b32 s{sT2}, s{sD}, 16
        s_and_b32 s{sT3}, s{sD}, s{sMASK}
        s_cmp_eq_u32 s{sT1}, 0
        s_cselect_b32 s{sT2}, s{sT2}, s{sT3}
        v_lshlrev_b32 v{vT}, 16, v{FR+4}
        v_add_f32 v{vT}, s{sT2}, v{vT}
        v_and_b32 v{vT+1}, s{sMASK}, v{FR+4}
        v_cvt_pk_bf16_f32 v{vT}, v{vT}, v{vT+1}
        v_cmp_eq_u32 vcc, 1, v{vT+2}
        v_cndmask_b32 v{FR+4}, v{FR+4}, v{vT}, vcc""")
        for it, d in enumerate(([FR+i for i in range(6)], [FR+8+i for i in range(6)], [FR+16, FR+17, FR+18, FR+19, FR+6, FR+7])):
            B = AL + 16 * it
            for i in range(4): e(f"v_alignbit_b32 v{B+i}, v{d[i+1]}, v{d[i]}, 16")
            for i in range(4): e(f"v_mov_b32 v{B+4+i}, v{d[i+1]}")
            for i in range(4): e(f"v_alignbit_b32 v{B+8+i}, v{d[i+2]}, v{d[i+1]}, 16")
            for i in range(4): e(f"v_mov_b32 v{B+12+i}, v{d[i+2]}")
            if it == 2: e(f"v_cmp_gt_u32 vcc, 2, v{vT+2}\ns_and_saveexec_b64 s[{sEX}:{sEX+1}], vcc")
            for cp in range(4): e(f"ds_write_b128 v{vGW}, {v(B+4*cp,4)} offset:{L_G + GSTR*cp + 2048*it}")
            if it == 2: e(f"s_mov_b64 exec, s[{sEX}:{sEX+1}]")
        e(f"""s_mul_i32 s{sT0}, s{sT1}, {RSTR}
        v_add_u32 v{vT}, s{sT0}, v{vT+3}
        v_mov_b32 v20, 0
        v_mov_b32 v21, 0
        v_mov_b32 v22, 0
        v_mov_b32 v23, 0
        v_cmp_gt_u32 vcc, 30, v{vT+2}
        s_and_saveexec_b64 s[{sEX}:{sEX+1}], vcc
        ds_write_b128 v{vT}, v[20:23] offset:{L_R + 4096}
        s_mov_b64 exec, s[{sEX}:{sEX+1}]
        s_waitcnt lgkmcnt(0)
        s_barrier""")
    def pa(s):
        e = s.e; o = s.o
        ACC = 16; FA = [48, 80]; FB = [112, 144]; STT = 176; XB = 208; UU = 216; XX = 232
        IN = 112
        vAa, vBa, vIN, vRW, vXR, vST, vHS, vEW = 248, 249, 250, 251, 252, 253, 254, 255
        e(f"""s_lshr_b32 s{sT1}, s{sW}, 1
        s_and_b32 s{sT2}, s{sW}, 1
        v_and_b32 v{vT}, 3, v{vL}
        v_mul_u32_u24 v{vT}, {GSTR}, v{vT}
        v_bfe_u32 v{vT+1}, v{vL}, 2, 2
        v_lshl_add_u32 v{vT}, v{vT+1}, 3, v{vT}
        v_lshrrev_b32 v{vT+1}, 4, v{vL}
        v_lshl_add_u32 v{vT}, v{vT+1}, 4, v{vT}
        s_mul_i32 s{sT0}, s{sT1}, {4*GSTR}
        s_lshl_b32 s{sT3}, s{sT2}, 8
        s_add_u32 s{sT0}, s{sT0}, s{sT3}
        v_add_u32 v{vAa}, s{sT0}, v{vT}""")
        def rdA(bb):
            out = []
            for a in range(8):
                for h in range(2): out.append(f"ds_read_b64 {v(FA[bb&1]+4*a+2*h,2)}, v{vAa} offset:{L_G + 64*(8*a+bb) + 8*h} ;#A{bb}")
            return out
        def rdB(bb):
            return [f"ds_read_b128 {v(FB[bb&1]+4*m,4)}, v{vBa} offset:{L_R + 64*(56-8*m+bb)} ;#B{bb}_{m}" for m in range(8)]
        e(rdA(0))
        e(f"""v_and_b32 v{vT}, 15, v{vL}
        v_lshlrev_b32 v{vT+2}, 5, v{vT}
        v_lshlrev_b32 v{vT+3}, 4, v{vT+1}
        v_sub_u32 v{vT+3}, v{vT+3}, v{vT+2}
        s_mul_i32 s{sT0}, s{sT1}, {RSTR}
        s_add_u32 s{sT0}, s{sT0}, s{sT3}
        s_add_u32 s{sT0}, s{sT0}, 480
        v_add_u32 v{vBa}, s{sT0}, v{vT+3}
        v_lshl_add_u32 v{vT+2}, v{vT+1}, 3, v{vT+2}
        s_lshl_b32 s{sT0}, s{sT1}, 12
        s_lshl_b32 s{sT3}, s{sT2}, 11
        s_add_u32 s{sT0}, s{sT0}, s{sT3}
        v_add_u32 v{vXR}, s{sT0}, v{vT+2}
        s_lshl_b32 s{sT3}, s{sT2}, 13
        s_add_u32 s{sT3}, s{sT3}, {WS_ST}
        v_lshlrev_b32 v{vT+2}, 2, v{vT+2}
        v_add_u32 v{vST}, s{sT3}, v{vT+2}
        v_lshrrev_b32 v{vT+2}, 2, v{vT}
        v_mul_u32_u24 v{vT+2}, 57344, v{vT+2}
        v_and_b32 v{vT}, 3, v{vT}
        v_lshl_add_u32 v{vT+2}, v{vT}, 5, v{vT+2}
        v_lshl_add_u32 v{vT+2}, v{vT+1}, 3, v{vT+2}
        s_lshl_b32 s{sT0}, s2, 1
        s_add_u32 s{sT0}, s{sT0}, s{sT1}
        s_lshl_b32 s{sT0}, s{sT0}, 7
        s_mul_i32 s{sT3}, s{sT2}, {16*57344}
        s_add_u32 s{sT0}, s{sT0}, s{sT3}
        s_add_u32 s{sT0}, s{sT0}, {WS_HT}
        v_add_u32 v{vHS}, s{sT0}, v{vT+2}
        s_lshl_b32 s{sT0}, s{sW}, 12
        v_lshlrev_b32 v{vT}, 4, v{vL}
        v_add_u32 v{vEW}, s{sT0}, v{vT}
        v_lshrrev_b32 v{vT}, 3, v0
        v_mul_u32_u24 v{vT}, 768, v{vT}
        v_and_b32 v{vT+1}, 7, v0
        v_lshl_add_u32 v{vT}, v{vT+1}, 4, v{vT}
        s_mul_i32 s{sT0}, s2, 24576
        s_add_u32 s{sT0}, s{sT0}, {WS_X1}
        v_add_u32 v{vIN}, s{sT0}, v{vT}
        v_lshlrev_b32 v{vT}, 4, v0
        v_sub_u32 v{vRW}, 4080, v{vT}
        s_mov_b32 s{sCNT}, {o['spin']}
        s_waitcnt vmcnt(0)""")
        s.ts()
        e("Lpoll1:")
        for j in range(6): e(f"buffer_load_dwordx4 {v(IN+4*j,4)}, v{vIN}, {srd(SWS)}, 0 offen offset:{128*j} sc1 ;#in")
        e(f"s_sub_u32 s{sCNT}, s{sCNT}, 1\ns_cbranch_scc1 Lpoll1x\ns_waitcnt vmcnt(0)")
        e(s.tagcheck([IN, IN+7, IN+8, IN+15, IN+16, IN+23], vT+1))
        e("s_cbranch_vccnz Lpoll1\nLpoll1x:\ns_waitcnt vmcnt(0)")
        s.ts()
        e(f"""ds_write_b128 v{vRW}, {v(IN+2,4)} offset:{L_R}
        ds_write_b128 v{vRW}, {v(IN+10,4)} offset:{L_R+RSTR}
        ds_write_b128 v{vT}, {v(IN+18,4)} offset:{L_X}
        v_add_u32 v{vT}, {L_X+4096}, v{vT}
        ds_write2_b32 v{vT}, v{IN+1}, v{IN+6} offset0:0 offset1:1
        ds_write2_b32 v{vT}, v{IN+9}, v{IN+14} offset0:2 offset1:3""")
        stats = []
        for qq in range(4):
            for h in range(2): stats.append(f"buffer_load_dwordx4 {v(STT+8*qq+4*h,4)}, v{vST}, {srd(SWS)}, 0 offen offset:{(2048*qq)%4096+16*h} ;#st" if qq < 2 else
                                            f"buffer_load_dwordx4 {v(STT+8*qq+4*h,4)}, v{vST}, {srd(SWS)}, s{sT3} offen offset:{(2048*qq)%4096+16*h} ;#st")
        e(f"s_mov_b32 s{sT3}, 4096")
        e(stats)
        e("s_waitcnt lgkmcnt(0)\ns_barrier")
        e(rdB(0))
        xrd = [f"ds_read_b64 {v(XB+2*qq,2)}, v{vXR} offset:{L_X + 512*qq} ;#xb" for qq in range(4)]
        r2 = s.dma_w(1, 16, 12, 0) if o["r2"] else []
        if o["bbts"]: s.ts()
        up = []
        up.append("WAIT vm:st")
        up += s.tagcheck([STT+4*i+3 for i in range(8)], vT+1)
        up.append("s_cbranch_vccnz Lstretry\nLstok:")
        for qq in range(4):
            for r in range(4):
                xs = XB + 2*qq + r//2; bs = STT + 8*qq + 4*(r//2) + 2; a_ = STT + 8*qq + 4*(r//2) + (r & 1)
                un = (lambda d, src: f"v_and_b32 v{d}, s{sMASK}, v{src}") if r & 1 else (lambda d, src: f"v_lshlrev_b32 v{d}, 16, v{src}")
                up += [un(XX+4*qq+r, xs), un(UU+4*qq+r, bs), f"v_fmac_f32 v{UU+4*qq+r}, v{XX+4*qq+r}, v{a_}"]
        for bb in range(4):
            mf = []
            for m in range(8):
                for a in range(8 - m):
                    q = a + m
                    c = "0" if (bb == 0 and m == 0) else v(ACC+4*q, 4)
                    ins = f"v_mfma_f32_16x16x32_bf16 {v(ACC+4*q,4)}, {v(FA[bb&1]+4*a,4)}, {v(FB[bb&1]+4*m,4)}, {c}"
                    if bb == 0 and a == 0: ins = f"WAIT ds:B0_{m}\n" + ins
                    mf.append(ins)
            fill = []
            if bb < 3:
                A_, B_ = rdA(bb+1), rdB(bb+1)
                fill = interleave(A_, B_)
            if o["r2all"]:
                q = [r2[6*bb + i] for i in range(6)] if r2 else []
                if bb == 0: mf = interleave(interleave(mf, xrd + fill, 8, 32), q, 0, 64)
                elif bb == 1: mf = interleave(interleave(mf, fill, 0, 28), ["s_barrier"] + q, 2, 60)
                elif bb == 2: mf = interleave(interleave(mf, fill, 0, 28), q, 0, 60)
                else: mf = interleave(mf, q[:1] + up + q[1:], 0, 34)
            elif bb == 0: mf = interleave(mf, xrd + fill, 8, 32)
            elif bb == 1: mf = interleave(interleave(mf, fill, 0, 28), ["s_barrier"] + r2[:12], 2, 56)
            elif bb == 2: mf = interleave(interleave(mf, fill, 0, 28), r2[12:], 0, 56)
            else: mf = interleave(mf, up, 0, 34)
            if bb > 0: e("s_waitcnt lgkmcnt(0)")
            e(mf)
            if o["bbts"] and bb < 3: s.ts()
        s.ts()
        e("s_nop 7")
        e(f"s_bitcmp1_b32 s{sW}, 0\ns_cbranch_scc1 Lep1")
        dsq0 = list(e.dsq)
        for hb in range(2):
            if hb: e("Lep1:"); e.dsq = list(dsq0)
            snd = ACC + 16*(1-hb); keep = ACC + 16*hb
            for qq in range(4): e(f"ds_write_b128 v{vEW}, {v(snd+4*qq,4)} offset:{L_EX + 1024*qq}")
            for i in range(16): e(f"v_fmac_f32 v{XX+i}, v{UU+i}, v{keep+i}")
            if not hb: e("s_branch Lep2")
        e(f"""Lep2:
        v_xor_b32 v{vEW}, 4096, v{vEW}
        s_waitcnt lgkmcnt(0)
        s_barrier""")
        RC = 48
        for qq in range(4): e(f"ds_read_b128 {v(RC+4*qq,4)}, v{vEW} offset:{L_EX + 1024*qq} ;#rc{qq}")
        for qq in range(4):
            e(f"s_mov_b32 s{sT0}, {4*qq*57344}\nWAIT ds:rc{qq}")
            for r in range(4): e(f"v_fmac_f32 v{XX+4*qq+r}, v{UU+4*qq+r}, v{RC+4*qq+r}")
            e(f"""v_cvt_pk_bf16_f32 v{RC+16+2*qq}, v{XX+4*qq}, v{XX+4*qq+1}
            v_cvt_pk_bf16_f32 v{RC+17+2*qq}, v{XX+4*qq+2}, v{XX+4*qq+3}
            buffer_store_dwordx2 {v(RC+16+2*qq,2)}, v{vHS}, {srd(SWS)}, s{sT0} offen sc1 ;#h""")
        s.ts()
        def retry():
            e(f"Lstretry:\ns_mov_b32 s{sCNT}, {o['spin']}\nLstretry1:")
            for x in stats: e(x.replace(" ;#", " sc1 ;#"))
            e(f"s_sub_u32 s{sCNT}, s{sCNT}, 1\ns_cbranch_scc1 Lstretry2\ns_waitcnt vmcnt(0)")
            e(s.tagcheck([STT+4*i+3 for i in range(8)], vT+1))
            e("s_cbranch_vccnz Lstretry1\nLstretry2:\ns_waitcnt vmcnt(0)\ns_branch Lstok")
        s.tail.append(retry)
    def helper(s):
        e = s.e; o = s.o
        e.vmq = []; e.dsq = []
        D = 20
        e(f"""Lhelper:
        s_sub_u32 s{sR}, s2, 224
        s_mul_i32 s{sT0}, s{sR}, {64*896}
        v_lshrrev_b32 v{vT}, 2, v0
        v_mul_u32_u24 v{vT}, 896, v{vT}
        v_and_b32 v{vT+1}, 3, v0
        v_lshl_add_u32 v16, v{vT+1}, 4, v{vT}
        s_waitcnt lgkmcnt(0)
        s_load_dword s{sT}, s[{SWS}:{SWS+1}], {WS_E}""")
        for i in range(14): e(f"buffer_load_dwordx4 {v(D+4*i,4)}, v16, {srd(SX)}, s{sT0} offen offset:{64*i} ;#hx{i}")
        e(f"""v_mov_b32 v80, 0
        v_mov_b32 v81, 0
        v_mov_b32 v82, 0
        v_mov_b32 v83, 0
        v_mov_b32 v84, 0x3f803f80
        s_lshl_b32 s{sT0}, s{sR}, 9
        s_add_u32 s{sT0}, s{sT0}, {WS_ST}
        v_lshlrev_b32 v17, 1, v0
        v_add_u32 v17, s{sT0}, v17
        s_waitcnt lgkmcnt(0)
        s_add_u32 s{sT}, s{sT}, {TAGC}""")
        for i in range(14):
            e(f"WAIT vm:hx{i}")
            for d in range(4):
                e(f"v_dot2_f32_bf16 v{80+(d&1)}, v{D+4*i+d}, v84, v{80+(d&1)}\nv_dot2_f32_bf16 v{82+(d&1)}, v{D+4*i+d}, v{D+4*i+d}, v{82+(d&1)}")
        dp = lambda p: f"quad_perm:{p} row_mask:0xf bank_mask:0xf"
        e(f"""v_add_f32 v80, v80, v81
        v_add_f32 v82, v82, v83
        v_add_f32_dpp v80, v80, v80 {dp('[1,0,3,2]')}
        v_add_f32_dpp v82, v82, v82 {dp('[1,0,3,2]')}
        v_add_f32_dpp v80, v80, v80 {dp('[2,3,0,1]')}
        v_add_f32_dpp v82, v82, v82 {dp('[2,3,0,1]')}
        v_mul_f32 v80, {1/448!r}, v80
        v_mul_f32 v82, {1/448!r}, v82
        v_fma_f32 v82, -v80, v80, v82
        v_max_f32 v82, 0, v82
        v_add_f32 v82, 0x3727c5ac, v82
        v_rsq_f32 v88, v82
        v_mul_f32 v80, v80, v88
        v_sub_f32 v80, 0, v80
        v_mov_b32_dpp v89, v88 row_shl:4 row_mask:0xf bank_mask:0xf
        v_mov_b32_dpp v81, v80 row_shl:4 row_mask:0xf bank_mask:0xf
        v_cvt_pk_bf16_f32 v90, v80, v81
        v_mov_b32 v91, s{sT}
        v_and_b32 v{vT}, 7, v0
        v_cmp_eq_u32 vcc, 0, v{vT}
        s_and_saveexec_b64 s[{sEX}:{sEX+1}], vcc
        buffer_store_dwordx4 v[88:91], v17, {srd(SWS)}, 0 offen sc1
        s_mov_b64 exec, s[{sEX}:{sEX+1}]
        s_waitcnt vmcnt(0)""")
        if o["ts"]:
            for k in range(14): e(f"s_memrealtime s[{4+2*k}:{5+2*k}]")
            e("s_branch Lts")
        else: e("s_endpgm")
    def finish(s):
        e = s.e; o = s.o
        e(f"""s_cmp_lg_u32 s2, 0
        s_cbranch_scc1 Lts
        v_mov_b32 v{vT}, s{sT}
        v_mov_b32 v{vT+1}, {WS_E}
        v_cmp_eq_u32 vcc, 0, v0
        s_and_saveexec_b64 s[{sEX}:{sEX+1}], vcc
        s_cbranch_execz Lts
        buffer_store_dword v{vT}, v{vT+1}, {srd(SWS)}, 0 offen
        Lts:""")
        if o["ts"]:
            e(f"""s_mov_b64 exec, -1
            s_waitcnt vmcnt(0)
            s_memrealtime s[100:101]
            s_lshl_b32 s{sT0}, s2, 2
            s_add_u32 s{sT0}, s{sT0}, s{sW}
            s_lshl_b32 s{sT0}, s{sT0}, 6
            s_add_u32 s{sT0}, s{sT0}, {WS_TS}
            v_mov_b32 v{vT}, s{sT0}
            s_waitcnt lgkmcnt(0)
            v_mov_b32 v16, s98""")
            for k in range(14): e(f"v_mov_b32 v{17+k}, s{4+2*k}")
            e(f"""v_mov_b32 v31, s100
            v_cmp_eq_u32 vcc, 0, v{vL}
            s_and_saveexec_b64 s[{sEX}:{sEX+1}], vcc""")
            for k in range(4): e(f"buffer_store_dwordx4 {v(16+4*k,4)}, v{vT}, {srd(SWS)}, 0 offen offset:{16*k}")
        e("s_endpgm")
    def build(s):
        e = s.e; o = s.o
        s.tail = []
        s.prologue(); s.p0(); s.pa()
        if o["stop"] != "PA":
            import gen_mlp
            gen_mlp.mlp(s)
        s.finish()
        for f in s.tail: f()
        s.helper()
        e("Lend:\ns_endpgm")
        n = e.fix(verbose=o.get("verbose", False))
        hdr = open("header.txt").read()
        txt = hdr + f"; @launch grid=(256,1,1) block=(256,1,1) lds={LDS_BYTES}\n" + f""".amdgcn_target "amdgcn-amd-amdhsa--gfx950"
.text
.globl {K}
.p2align 8
.type {K},@function
{K}:
""" + e.text() + f""".section .rodata,"a"
.p2align 6
.amdhsa_kernel {K}
  .amdhsa_next_free_vgpr 512
  .amdhsa_next_free_sgpr 102
  .amdhsa_accum_offset 256
  .amdhsa_group_segment_fixed_size 0
  .amdhsa_kernarg_size 104
  .amdhsa_user_sgpr_count 2
  .amdhsa_user_sgpr_kernarg_segment_ptr 1
  .amdhsa_system_sgpr_workgroup_id_x 1
.end_amdhsa_kernel
"""
        return txt, n
def parse_opts(args):
    o = {}
    for a in args:
        k, x = a.split("=")
        try: x = eval(x)
        except Exception: pass
        o[k] = x
    return o
if __name__ == "__main__":
    out = sys.argv[1]
    t, n = G(**parse_opts(sys.argv[2:])).build()
    open(out, "w").write(t)
    print(out, "nops inserted:", n, file=sys.stderr)
```

```python
import sys
from emit import *
K = "sequential_preLN__ssm_conv_h3__dense_activation_mish__prompt_kernel"

WS_E = 0
WS_F2 = 0x1000
WS_F3 = 0x10000
WS_ST = 0x50000
WS_X1 = 0x100000
WS_HT = 0x700000
WS_PART = 0x900000
WS_TS = 0x1600000
WS_SIZE = 0x1700000
TAGC = 0x9E3779B1

L_G = 0; GSTR = 4160
L_R = 33280; RSTR = 4608
L_X = 42496
L_EX = 42496
L_R1X = 25088
L_STG = 59392; STGS = 24576
L_SX = 157696
LDS_BYTES = 159744

SX, SK, SV, SF, SW1, SW2, SWS, SOUT, SB1, SSK = 32, 36, 40, 44, 48, 52, 56, 60, 64, 68
sT, sW, sG, sR, sTB, sJ = 72, 73, 74, 75, 76, 77
sD, sMASK, sPL, sPH = 78, 79, 80, 81
sM0, sOFF, sCNT, sT0, sT1, sT2, sT3 = 82, 83, 84, 85, 86, 87, 88
sSTG = 89
sDP = 90
sEX = 92
sPC = 94
def srd(b): return f"s[{b}:{b+3}]"
def v(a, n=1): return f"v{a}" if n == 1 else f"v[{a}:{a+n-1}]"
def ar(a, n=1): return f"a{a}" if n == 1 else f"a[{a}:{a+n-1}]"
vL, vTRA0, vTRA1, vTRB0, vTRB1 = 1, 2, 3, 4, 5
vDW = 6
vDH = 10
vT = 11

class G:
    def __init__(s, **o):
        s.o = dict(ts=False, stop=None, r1_early=True, spin=200000, f2s=128, nt=True, prefetch=True, r2=True, bbts=False, r2span=(1,2), mp='tb', r2all=True)
        s.o.update(o)
        s.e = E(); s.nts = 0
    def ts(s):
        if s.o["ts"]:
            s.ncall = getattr(s, "ncall", 0) + 1
            if s.ncall in s.o.get("tsskip", ()): return
            k = s.nts; s.nts += 1
            assert k < 14
            s.e(f"s_memrealtime s[{4+2*k}:{5+2*k}]")
    def dma_w(s, which, k0, n, lds, ldsreg=None, base=None, extra=0, tag=None):
        stride = 3584 if which == 1 else 896
        if base is None: base = "s96" if which == 1 else "s97"
        S = SW1 if which == 1 else SW2
        out = []
        for g in range(n // 2):
            ks = k0 + 2 * g
            reg = f"s{sSTG}" if ldsreg is None else ldsreg
            pre = [f"s_add_u32 m0, {reg}, {lds + 4096 * g}", f"s_add_u32 s{sOFF}, {base}, {ks * 16 * stride + extra}"]
            for i in range(4):
                ins = f"buffer_load_dwordx4 v{vDW+i}, {srd(S)}, s{sOFF} offen offset:{1024*i} lds"
                out.append("\n".join(pre + [ins]) if i == 0 else ins)
        return out
    def tr_w(s, n, lds, dst, a0=vTRA0, a1=vTRA1, tag="trw"):
        out = []
        for k in range(n):
            for T in range(2):
                for sec in range(2):
                    kind, r = dst(k, T)
                    reg = f"{kind}[{r+2*sec}:{r+2*sec+1}]"
                    out.append(f"ds_read_b64_tr_b16 {reg}, v{a0 if T == 0 else a1} offset:{lds + 2048*k + 512*sec} ;#{tag}")
        return out
    def set_dw(s, stride):
        e = s.e
        e(f"""v_lshrrev_b32 v{vT}, 3, v{vL}
        v_lshrrev_b32 v{vT+1}, 2, v{vL}
        v_and_b32 v{vT+1}, 4, v{vT+1}
        v_and_b32 v{vT+2}, 7, v{vL}
        v_xor_b32 v{vT+1}, v{vT+1}, v{vT+2}
        v_lshlrev_b32 v{vT+1}, 4, v{vT+1}
        v_mul_u32_u24 v{vT}, {stride}, v{vT}
        v_add_u32 v{vDW}, v{vT}, v{vT+1}""")
        for i in range(1, 4): e(f"v_add_u32 v{vDW+i}, {i*(8*stride-1024)}, v{vDW}")
    def tagcheck(s, regs, acc):
        out = [f"v_xor_b32 v{acc}, s{sT}, v{regs[0]}"]
        for r in regs[1:]: out.append(f"v_bitop3_b32 v{acc}, v{acc}, v{r}, s{sT} bitop3:0xf6")
        out.append(f"v_cmp_ne_u32 vcc, 0, v{acc}")
        return out
    def prologue(s):
        e = s.e; o = s.o
        if o["ts"]: e("s_memrealtime s[98:99]")
        e(f"""s_cmp_ge_u32 s2, 256
        s_cbranch_scc1 Lend
        s_load_dwordx2 s[{SWS}:{SWS+1}], s[0:1], 96
        s_load_dwordx2 s[{SK}:{SK+1}], s[0:1], 8
        s_load_dwordx2 s[{SV}:{SV+1}], s[0:1], 16
        s_load_dwordx2 s[{SX}:{SX+1}], s[0:1], 0
        s_load_dwordx2 s[{SSK}:{SSK+1}], s[0:1], 24
        s_load_dwordx2 s[{SF}:{SF+1}], s[0:1], 32
        s_load_dwordx2 s[{sDP}:{sDP+1}], s[0:1], 40
        s_load_dwordx2 s[{SW1}:{SW1+1}], s[0:1], 56
        s_load_dwordx2 s[{SB1}:{SB1+1}], s[0:1], 64
        s_load_dwordx2 s[{SW2}:{SW2+1}], s[0:1], 72
        s_load_dwordx2 s[{SOUT}:{SOUT+1}], s[0:1], 80""")
        if o["prefetch"]:
            e(f"""s_getpc_b64 s[{sPC}:{sPC+1}]
            Lpc:
            v_lshlrev_b32 v{vT}, 7, v0
            v_min_u32 v{vT}, Lend-Lpc, v{vT}
            global_load_dword v{vT+4}, v{vT}, s[{sPC}:{sPC+1}] ;#pf""")
        for b, n in ((SK, 1835008), (SV, 1835008), (SX, 1835008), (SSK, 3584), (SF, 4096), (SW1, 1605632), (SB1, 3584), (SW2, 1605632), (SOUT, 1835008), (SWS, WS_SIZE)):
            e(f"s_mov_b32 s{b+2}, {n}\ns_mov_b32 s{b+3}, 0x20000")
        e(f"""v_lshrrev_b32 v{vT}, 6, v0
        v_and_b32 v{vL}, 63, v0
        v_readfirstlane_b32 s{sW}, v{vT}
        s_mov_b32 s{sMASK}, 0xffff0000
        s_mov_b32 s{sPL}, 0x05040100
        s_mov_b32 s{sPH}, 0x07060302
        s_lshr_b32 s{sG}, s2, 5
        s_and_b32 s{sR}, s2, 31
        s_cmp_ge_u32 s2, 224
        s_cbranch_scc1 Lhelper""")
    def p0(s):
        e = s.e; o = s.o
        nt = " nt" if o["nt"] else ""
        vA, vA5, vKm, vS = 16, 17, 18, 19
        KR, VR, XR, SKR = 20, 31, 39, 48
        FR = 160
        vFa, vFb, vFc = 180, 181, 182
        e(f"""s_mul_i32 s{sT0}, s{sR}, {64*896}
        s_lshl_b32 s{sT1}, s{sG}, 7
        s_add_u32 s{sT0}, s{sT0}, s{sT1}
        v_lshrrev_b32 v{vT}, 5, v0
        v_and_b32 v{vT+1}, 31, v0
        v_mul_u32_u24 v{vA}, {8*896}, v{vT}
        v_lshl_add_u32 v{vA}, v{vT+1}, 2, v{vA}
        v_add_u32 v{vA}, s{sT0}, v{vA}
        v_add_u32 v{vA5}, {5*896}, v{vA}
        v_subrev_u32 v{vKm}, {3*896}, v{vA}
        s_lshl_b32 s{sT1}, s{sG}, 9
        v_lshlrev_b32 v{vS}, 4, v{vT+1}
        v_add_u32 v{vS}, s{sT1}, v{vS}
        v_and_b32 v{vT+2}, 127, v0
        v_lshlrev_b32 v{vT+2}, 4, v{vT+2}
        v_subrev_u32 v{vFa}, 32, v{vT+2}
        v_subrev_u32 v{vFb}, 16, v{vT+2}
        v_add_u32 v{vFc}, 2016, v{vT+2}
        s_waitcnt lgkmcnt(0)""")
        e(f"s_load_dword s{sT}, s[{SWS}:{SWS+1}], {WS_E}")
        e(f"buffer_load_dwordx4 {v(SKR,4)}, v{vS}, {srd(SSK)}, 0 offen ;#sk")
        for i in range(11):
            a, off = (vKm, i) if i < 3 else ((vA, i-3) if i < 8 else (vA5, i-8))
            e(f"buffer_load_dword v{KR+i}, v{a}, {srd(SK)}, 0 offen offset:{896*off}{nt} ;#k")
        for S, R, tg in ((SV, VR, "v"), (SX, XR, "x")):
            for i in range(8):
                a, off = (vA, i) if i < 5 else (vA5, i-5)
                e(f"buffer_load_dword v{R+i}, v{a}, {srd(S)}, 0 offen offset:{896*off}{nt} ;#{tg}")
        e(f"""s_lshl_b32 s{sT0}, s2, 2
        s_load_dword s{sD}, s[{sDP}:{sDP+1}], s{sT0}
        s_lshr_b32 s{sT1}, s{sW}, 1
        s_lshl_b32 s{sT0}, s2, 1
        s_add_u32 s{sT0}, s{sT0}, s{sT1}
        s_lshl_b32 s{sT0}, s{sT0}, 12
        s_add_u32 s{SF}, s{SF}, s{sT0}
        s_addc_u32 s{SF+1}, s{SF+1}, 0""")
        e(f"""buffer_load_dwordx4 {v(FR,4)}, v{vFa}, {srd(SF)}, 0 offen{nt} ;#f
        buffer_load_dwordx2 {v(FR+4,2)}, v{vFb}, {srd(SF)}, 0 offen{nt} ;#f
        buffer_load_dwordx4 {v(FR+8,4)}, v{vFc}, {srd(SF)}, 0 offen{nt} ;#f
        buffer_load_dwordx2 {v(FR+12,2)}, v{vFc}, {srd(SF)}, 0 offen offset:16{nt} ;#f
        buffer_load_dwordx4 {v(FR+16,4)}, v{vFc}, {srd(SF)}, 0 offen offset:2048{nt} ;#f
        buffer_load_dwordx2 {v(FR+6,2)}, v{vFc}, {srd(SF)}, 0 offen offset:2064{nt} ;#f""")
        if o["mp"] == "tb":
            e(f"""s_lshr_b32 s{sT0}, s2, 3
            s_mul_i32 s{sT1}, s{sT0}, 37
            s_lshr_b32 s{sT1}, s{sT1}, 8
            s_mul_i32 s{sT2}, s{sT1}, 7
            s_sub_u32 s{sJ}, s{sT0}, s{sT2}
            s_and_b32 s{sT0}, s2, 7
            s_lshl_b32 s{sT0}, s{sT0}, 2
            s_add_u32 s{sTB}, s{sT0}, s{sT1}""")
        else:
            e(f"""s_lshr_b32 s{sT0}, s2, 3
            s_and_b32 s{sT1}, s2, 1
            s_mul_i32 s{sT1}, s{sT1}, 28
            s_add_u32 s{sT0}, s{sT0}, s{sT1}
            s_lshr_b32 s{sJ}, s{sT0}, 3
            s_and_b32 s{sT0}, s{sT0}, 7
            s_and_b32 s{sT1}, s2, 6
            s_lshl_b32 s{sT1}, s{sT1}, 2
            s_add_u32 s{sTB}, s{sT0}, s{sT1}""")
        e(f"""s_mul_i32 s{sSTG}, s{sW}, {STGS}
        s_add_u32 s{sSTG}, s{sSTG}, {L_STG}
        s_lshl_b32 s96, s{sJ}, 9
        s_lshl_b32 s{sT0}, s{sW}, 7
        s_add_u32 s96, s96, s{sT0}
        s_mul_i32 s97, s{sJ}, {256*896}
        s_add_u32 s97, s97, s{sT0}""")
        s.set_dw(3584)
        def r1():
            e(s.dma_w(1, 0, 12, 0))
            e(f"s_lshl_b32 s{sT3}, s{sW}, 13")
            e(s.dma_w(1, 12, 4, L_R1X, f"s{sT3}"))
        if o["r1_early"]: r1()
        e(f"""v_lshrrev_b32 v{vT}, 5, v{vL}
        v_bfe_u32 v{vT+1}, v{vL}, 2, 2
        v_lshl_add_u32 v{vT}, v{vT}, 3, v{vT+1}
        v_lshlrev_b32 v{vT}, 7, v{vT}
        v_lshrrev_b32 v{vT+1}, 1, v{vT+1}
        v_lshlrev_b32 v{vT+1}, 6, v{vT+1}
        v_bfe_u32 v{vT+2}, v{vL}, 4, 1
        v_lshl_or_b32 v{vT+1}, v{vT+2}, 5, v{vT+1}
        v_or_b32 v{vT}, v{vT}, v{vT+1}
        v_and_b32 v{vT+1}, 3, v{vL}
        v_lshl_or_b32 v{vTRB0}, v{vT+1}, 3, v{vT}
        v_xor_b32 v{vTRB1}, 64, v{vTRB0}
        v_and_b32 v{vT+1}, 1, v{vL}
        v_lshl_or_b32 v{vT}, v{vT+1}, 4, v{vT}
        v_bfe_u32 v{vT+1}, v{vL}, 1, 1
        v_lshl_or_b32 v{vT}, v{vT+1}, 3, v{vT}
        v_add_u32 v{vTRA0}, s{sSTG}, v{vT}
        v_xor_b32 v{vTRA1}, 64, v{vTRA0}""")
        vSW, vSR, vPUB = 183, 184, 185
        e(f"""v_and_b32 v{vT}, 31, v0
        v_mul_u32_u24 v{vT}, 784, v{vT}
        v_lshrrev_b32 v{vT+1}, 5, v0
        v_lshl_add_u32 v{vSW}, v{vT+1}, 4, v{vT}
        v_lshrrev_b32 v{vT}, 3, v0
        v_and_b32 v{vT+1}, 7, v0
        v_mul_u32_u24 v{vT+2}, 784, v{vT}
        v_lshl_add_u32 v{vSR}, v{vT+1}, 4, v{vT+2}
        v_mul_u32_u24 v{vT+2}, 24576, v{vT}
        v_lshl_add_u32 v{vPUB}, v{vT+1}, 4, v{vT+2}
        s_mul_i32 s{sT0}, s{sG}, {32*24576}
        s_mul_i32 s{sT1}, s{sR}, 768
        s_add_u32 s{sT0}, s{sT0}, s{sT1}
        s_add_u32 s{sT0}, s{sT0}, {WS_X1}
        v_add_u32 v{vPUB}, s{sT0}, v{vPUB}
        s_waitcnt lgkmcnt(0)
        s_add_u32 s{sT}, s{sT}, {TAGC}""")
        KF, VF, SKF, KS, OUT = 52, 74, 90, 98, 116
        for t in (0, 7, 8, 15, 16, 23): e(f"v_mov_b32 v{OUT+t}, s{sT}")
        e(f"v_mov_b32 v{OUT+17}, 0\nv_mov_b32 v{OUT+22}, 0")
        e("WAIT vm:sk")
        for jj, (a, b, hi) in enumerate(((0, 2, 0), (0, 2, 1), (1, 3, 0), (1, 3, 1))):
            for h, r in enumerate((a, b)):
                e(f"v_and_b32 v{SKF+2*jj+h}, s{sMASK}, v{SKR+r}" if hi else f"v_lshlrev_b32 v{SKF+2*jj+h}, 16, v{SKR+r}")
        e("WAIT vm:k")
        s.ts()
        for i in range(11):
            e(f"v_lshlrev_b32 v{KF+2*i}, 16, v{KR+i}\nv_and_b32 v{KF+2*i+1}, s{sMASK}, v{KR+i}")
        for jj in range(4):
            for i in range(8):
                kk = KF + 2 * (i + 3 - jj)
                if jj == 0: e(f"v_pk_mul_f32 {v(KS+2*i,2)}, {v(SKF,2)}, {v(kk,2)}")
                else: e(f"v_pk_fma_f32 {v(KS+2*i,2)}, {v(SKF+2*jj,2)}, {v(kk,2)}, {v(KS+2*i,2)}")
        e("WAIT vm:v")
        for i in range(8):
            e(f"v_lshlrev_b32 v{VF+2*i}, 16, v{VR+i}\nv_and_b32 v{VF+2*i+1}, s{sMASK}, v{VR+i}")
        for i in range(8): e(f"v_pk_mul_f32 {v(KS+2*i,2)}, {v(KS+2*i,2)}, {v(VF+2*i,2)}")
        for ch, o0 in ((0, 2), (1, 10)):
            for d in range(4): e(f"v_cvt_pk_bf16_f32 v{OUT+o0+d}, v{KS+2*(7-2*d)+ch}, v{KS+2*(6-2*d)+ch}")
        e("WAIT vm:x")
        s.ts()
        for d, r in enumerate((1, 6, 9, 14)): e(f"v_perm_b32 v{OUT+r}, v{XR+2*d+1}, v{XR+2*d}, s{sPH}")
        for j in range(4): e(f"ds_write_b128 v{vSW}, {v(OUT+4*j,4)} offset:{128*j} ;#sw")
        for d in range(4): e(f"v_perm_b32 v{OUT+18+d}, v{XR+2*d+1}, v{XR+2*d}, s{sPL}")
        for j in range(4, 6): e(f"ds_write_b128 v{vSW}, {v(OUT+4*j,4)} offset:{128*j} ;#sw")
        e("WAIT ds:sw\ns_barrier")
        PB_ = 20
        for j in range(6): e(f"ds_read_b128 {v(PB_+4*j,4)}, v{vSR} offset:{128*j} ;#sr{j}")
        for j in range(6): e(f"WAIT ds:sr{j}\nbuffer_store_dwordx4 {v(PB_+4*j,4)}, v{vPUB}, {srd(SWS)}, 0 offen offset:{128*j} sc1 ;#pub")
        s.ts()
        if not o["r1_early"]: r1()
        e("WAIT vm:w1_15")
        e(s.tr_w(12, 0, lambda k, T: ("a", 8*k + 4*T)))
        e(f"""s_mul_i32 s{sT0}, s{sW}, {STGS - 8192}
        s_add_u32 s{sT0}, s{sT0}, {L_STG - L_R1X}
        v_subrev_u32 v{vT}, s{sT0}, v{vTRA0}
        v_subrev_u32 v{vT+1}, s{sT0}, v{vTRA1}""")
        e(s.tr_w(4, 0, lambda k, T: ("a", 8*(12+k) + 4*T), vT, vT+1))
        e("s_waitcnt lgkmcnt(0)\ns_barrier")
        s.ts()
        vGW = 186; AL = 20
        e(f"""s_lshr_b32 s{sT1}, s{sW}, 1
        s_mul_i32 s{sT0}, s{sT1}, {4*GSTR}
        v_and_b32 v{vT+2}, 127, v0
        v_lshlrev_b32 v{vT+3}, 4, v{vT+2}
        v_add_u32 v{vGW}, s{sT0}, v{vT+3}
        s_lshl_b32 s{sT2}, s{sD}, 16
        s_and_b32 s{sT3}, s{sD}, s{sMASK}
        s_cmp_eq_u32 s{sT1}, 0
        s_cselect_b32 s{sT2}, s{sT2}, s{sT3}
        v_lshlrev_b32 v{vT}, 16, v{FR+4}
        v_add_f32 v{vT}, s{sT2}, v{vT}
        v_and_b32 v{vT+1}, s{sMASK}, v{FR+4}
        v_cvt_pk_bf16_f32 v{vT}, v{vT}, v{vT+1}
        v_cmp_eq_u32 vcc, 1, v{vT+2}
        v_cndmask_b32 v{FR+4}, v{FR+4}, v{vT}, vcc""")
        for it, d in enumerate(([FR+i for i in range(6)], [FR+8+i for i in range(6)], [FR+16, FR+17, FR+18, FR+19, FR+6, FR+7])):
            B = AL + 16 * it
            for i in range(4): e(f"v_alignbit_b32 v{B+i}, v{d[i+1]}, v{d[i]}, 16")
            for i in range(4): e(f"v_mov_b32 v{B+4+i}, v{d[i+1]}")
            for i in range(4): e(f"v_alignbit_b32 v{B+8+i}, v{d[i+2]}, v{d[i+1]}, 16")
            for i in range(4): e(f"v_mov_b32 v{B+12+i}, v{d[i+2]}")
            if it == 2: e(f"v_cmp_gt_u32 vcc, 2, v{vT+2}\ns_and_saveexec_b64 s[{sEX}:{sEX+1}], vcc")
            for cp in range(4): e(f"ds_write_b128 v{vGW}, {v(B+4*cp,4)} offset:{L_G + GSTR*cp + 2048*it}")
            if it == 2: e(f"s_mov_b64 exec, s[{sEX}:{sEX+1}]")
        e(f"""s_mul_i32 s{sT0}, s{sT1}, {RSTR}
        v_add_u32 v{vT}, s{sT0}, v{vT+3}
        v_mov_b32 v20, 0
        v_mov_b32 v21, 0
        v_mov_b32 v22, 0
        v_mov_b32 v23, 0
        v_cmp_gt_u32 vcc, 30, v{vT+2}
        s_and_saveexec_b64 s[{sEX}:{sEX+1}], vcc
        ds_write_b128 v{vT}, v[20:23] offset:{L_R + 4096}
        s_mov_b64 exec, s[{sEX}:{sEX+1}]
        s_waitcnt lgkmcnt(0)
        s_barrier""")
    def pa(s):
        e = s.e; o = s.o
        ACC = 16; FA = [48, 80]; FB = [112, 144]; STT = 176; XB = 208; UU = 216; XX = 232
        IN = 112
        vAa, vBa, vIN, vRW, vXR, vST, vHS, vEW = 248, 249, 250, 251, 252, 253, 254, 255
        e(f"""s_lshr_b32 s{sT1}, s{sW}, 1
        s_and_b32 s{sT2}, s{sW}, 1
        v_and_b32 v{vT}, 3, v{vL}
        v_mul_u32_u24 v{vT}, {GSTR}, v{vT}
        v_bfe_u32 v{vT+1}, v{vL}, 2, 2
        v_lshl_add_u32 v{vT}, v{vT+1}, 3, v{vT}
        v_lshrrev_b32 v{vT+1}, 4, v{vL}
        v_lshl_add_u32 v{vT}, v{vT+1}, 4, v{vT}
        s_mul_i32 s{sT0}, s{sT1}, {4*GSTR}
        s_lshl_b32 s{sT3}, s{sT2}, 8
        s_add_u32 s{sT0}, s{sT0}, s{sT3}
        v_add_u32 v{vAa}, s{sT0}, v{vT}""")
        def rdA(bb):
            out = []
            for a in range(8):
                for h in range(2): out.append(f"ds_read_b64 {v(FA[bb&1]+4*a+2*h,2)}, v{vAa} offset:{L_G + 64*(8*a+bb) + 8*h} ;#A{bb}")
            return out
        def rdB(bb):
            return [f"ds_read_b128 {v(FB[bb&1]+4*m,4)}, v{vBa} offset:{L_R + 64*(56-8*m+bb)} ;#B{bb}_{m}" for m in range(8)]
        e(rdA(0))
        e(f"""v_and_b32 v{vT}, 15, v{vL}
        v_lshlrev_b32 v{vT+2}, 5, v{vT}
        v_lshlrev_b32 v{vT+3}, 4, v{vT+1}
        v_sub_u32 v{vT+3}, v{vT+3}, v{vT+2}
        s_mul_i32 s{sT0}, s{sT1}, {RSTR}
        s_add_u32 s{sT0}, s{sT0}, s{sT3}
        s_add_u32 s{sT0}, s{sT0}, 480
        v_add_u32 v{vBa}, s{sT0}, v{vT+3}
        v_lshl_add_u32 v{vT+2}, v{vT+1}, 3, v{vT+2}
        s_lshl_b32 s{sT0}, s{sT1}, 12
        s_lshl_b32 s{sT3}, s{sT2}, 11
        s_add_u32 s{sT0}, s{sT0}, s{sT3}
        v_add_u32 v{vXR}, s{sT0}, v{vT+2}
        s_lshl_b32 s{sT3}, s{sT2}, 13
        s_add_u32 s{sT3}, s{sT3}, {WS_ST}
        v_lshlrev_b32 v{vT+2}, 2, v{vT+2}
        v_add_u32 v{vST}, s{sT3}, v{vT+2}
        v_lshrrev_b32 v{vT+2}, 2, v{vT}
        v_mul_u32_u24 v{vT+2}, 57344, v{vT+2}
        v_and_b32 v{vT}, 3, v{vT}
        v_lshl_add_u32 v{vT+2}, v{vT}, 5, v{vT+2}
        v_lshl_add_u32 v{vT+2}, v{vT+1}, 3, v{vT+2}
        s_lshl_b32 s{sT0}, s2, 1
        s_add_u32 s{sT0}, s{sT0}, s{sT1}
        s_lshl_b32 s{sT0}, s{sT0}, 7
        s_mul_i32 s{sT3}, s{sT2}, {16*57344}
        s_add_u32 s{sT0}, s{sT0}, s{sT3}
        s_add_u32 s{sT0}, s{sT0}, {WS_HT}
        v_add_u32 v{vHS}, s{sT0}, v{vT+2}
        s_lshl_b32 s{sT0}, s{sW}, 12
        v_lshlrev_b32 v{vT}, 4, v{vL}
        v_add_u32 v{vEW}, s{sT0}, v{vT}
        v_lshrrev_b32 v{vT}, 3, v0
        v_mul_u32_u24 v{vT}, 768, v{vT}
        v_and_b32 v{vT+1}, 7, v0
        v_lshl_add_u32 v{vT}, v{vT+1}, 4, v{vT}
        s_mul_i32 s{sT0}, s2, 24576
        s_add_u32 s{sT0}, s{sT0}, {WS_X1}
        v_add_u32 v{vIN}, s{sT0}, v{vT}
        v_lshlrev_b32 v{vT}, 4, v0
        v_sub_u32 v{vRW}, 4080, v{vT}
        s_mov_b32 s{sCNT}, {o['spin']}
        s_waitcnt vmcnt(0)""")
        s.ts()
        e("Lpoll1:")
        for j in range(6): e(f"buffer_load_dwordx4 {v(IN+4*j,4)}, v{vIN}, {srd(SWS)}, 0 offen offset:{128*j} sc1 ;#in")
        e(f"s_sub_u32 s{sCNT}, s{sCNT}, 1\ns_cbranch_scc1 Lpoll1x\ns_waitcnt vmcnt(0)")
        e(s.tagcheck([IN, IN+7, IN+8, IN+15, IN+16, IN+23], vT+1))
        e("s_cbranch_vccnz Lpoll1\nLpoll1x:\ns_waitcnt vmcnt(0)")
        s.ts()
        e(f"""ds_write_b128 v{vRW}, {v(IN+2,4)} offset:{L_R}
        ds_write_b128 v{vRW}, {v(IN+10,4)} offset:{L_R+RSTR}
        ds_write_b128 v{vT}, {v(IN+18,4)} offset:{L_X}
        v_add_u32 v{vT}, {L_X+4096}, v{vT}
        ds_write2_b32 v{vT}, v{IN+1}, v{IN+6} offset0:0 offset1:1
        ds_write2_b32 v{vT}, v{IN+9}, v{IN+14} offset0:2 offset1:3""")
        stats = []
        for qq in range(4):
            for h in range(2): stats.append(f"buffer_load_dwordx4 {v(STT+8*qq+4*h,4)}, v{vST}, {srd(SWS)}, 0 offen offset:{(2048*qq)%4096+16*h} ;#st" if qq < 2 else
                                            f"buffer_load_dwordx4 {v(STT+8*qq+4*h,4)}, v{vST}, {srd(SWS)}, s{sT3} offen offset:{(2048*qq)%4096+16*h} ;#st")
        e(f"s_mov_b32 s{sT3}, 4096")
        e(stats)
        e("s_waitcnt lgkmcnt(0)\ns_barrier")
        e(rdB(0))
        xrd = [f"ds_read_b64 {v(XB+2*qq,2)}, v{vXR} offset:{L_X + 512*qq} ;#xb" for qq in range(4)]
        r2 = s.dma_w(1, 16, 12, 0) if o["r2"] else []
        if o["bbts"]: s.ts()
        up = []
        up.append("WAIT vm:st")
        up += s.tagcheck([STT+4*i+3 for i in range(8)], vT+1)
        up.append("s_cbranch_vccnz Lstretry\nLstok:")
        for qq in range(4):
            for r in range(4):
                xs = XB + 2*qq + r//2; bs = STT + 8*qq + 4*(r//2) + 2; a_ = STT + 8*qq + 4*(r//2) + (r & 1)
                un = (lambda d, src: f"v_and_b32 v{d}, s{sMASK}, v{src}") if r & 1 else (lambda d, src: f"v_lshlrev_b32 v{d}, 16, v{src}")
                up += [un(XX+4*qq+r, xs), un(UU+4*qq+r, bs), f"v_fmac_f32 v{UU+4*qq+r}, v{XX+4*qq+r}, v{a_}"]
        for bb in range(4):
            mf = []
            for m in range(8):
                for a in range(8 - m):
                    q = a + m
                    c = "0" if (bb == 0 and m == 0) else v(ACC+4*q, 4)
                    ins = f"v_mfma_f32_16x16x32_bf16 {v(ACC+4*q,4)}, {v(FA[bb&1]+4*a,4)}, {v(FB[bb&1]+4*m,4)}, {c}"
                    if bb == 0 and a == 0: ins = f"WAIT ds:B0_{m}\n" + ins
                    mf.append(ins)
            fill = []
            if bb < 3:
                A_, B_ = rdA(bb+1), rdB(bb+1)
                fill = interleave(A_, B_)
            if o["r2all"]:
                q = [r2[6*bb + i] for i in range(6)] if r2 else []
                if bb == 0: mf = interleave(interleave(mf, xrd + fill, 8, 32), q, 0, 64)
                elif bb == 1: mf = interleave(interleave(mf, fill, 0, 28), ["s_barrier"] + q, 2, 60)
                elif bb == 2: mf = interleave(interleave(mf, fill, 0, 28), q, 0, 60)
                else: mf = interleave(mf, q[:1] + up + q[1:], 0, 34)
            elif bb == 0: mf = interleave(mf, xrd + fill, 8, 32)
            elif bb == 1: mf = interleave(interleave(mf, fill, 0, 28), ["s_barrier"] + r2[:12], 2, 56)
            elif bb == 2: mf = interleave(interleave(mf, fill, 0, 28), r2[12:], 0, 56)
            else: mf = interleave(mf, up, 0, 34)
            if bb > 0: e("s_waitcnt lgkmcnt(0)")
            e(mf)
            if o["bbts"] and bb < 3: s.ts()
        s.ts()
        e("s_nop 7")
        e(f"s_bitcmp1_b32 s{sW}, 0\ns_cbranch_scc1 Lep1")
        dsq0 = list(e.dsq)
        for hb in range(2):
            if hb: e("Lep1:"); e.dsq = list(dsq0)
            snd = ACC + 16*(1-hb); keep = ACC + 16*hb
            for qq in range(4): e(f"ds_write_b128 v{vEW}, {v(snd+4*qq,4)} offset:{L_EX + 1024*qq}")
            for i in range(16): e(f"v_fmac_f32 v{XX+i}, v{UU+i}, v{keep+i}")
            if not hb: e("s_branch Lep2")
        e(f"""Lep2:
        v_xor_b32 v{vEW}, 4096, v{vEW}
        s_waitcnt lgkmcnt(0)
        s_barrier""")
        RC = 48
        for qq in range(4): e(f"ds_read_b128 {v(RC+4*qq,4)}, v{vEW} offset:{L_EX + 1024*qq} ;#rc{qq}")
        for qq in range(4):
            e(f"s_mov_b32 s{sT0}, {4*qq*57344}\nWAIT ds:rc{qq}")
            for r in range(4): e(f"v_fmac_f32 v{XX+4*qq+r}, v{UU+4*qq+r}, v{RC+4*qq+r}")
            e(f"""v_cvt_pk_bf16_f32 v{RC+16+2*qq}, v{XX+4*qq}, v{XX+4*qq+1}
            v_cvt_pk_bf16_f32 v{RC+17+2*qq}, v{XX+4*qq+2}, v{XX+4*qq+3}
            buffer_store_dwordx2 {v(RC+16+2*qq,2)}, v{vHS}, {srd(SWS)}, s{sT0} offen sc1 ;#h""")
        s.ts()
        def retry():
            e(f"Lstretry:\ns_mov_b32 s{sCNT}, {o['spin']}\nLstretry1:")
            for x in stats: e(x.replace(" ;#", " sc1 ;#"))
            e(f"s_sub_u32 s{sCNT}, s{sCNT}, 1\ns_cbranch_scc1 Lstretry2\ns_waitcnt vmcnt(0)")
            e(s.tagcheck([STT+4*i+3 for i in range(8)], vT+1))
            e("s_cbranch_vccnz Lstretry1\nLstretry2:\ns_waitcnt vmcnt(0)\ns_branch Lstok")
        s.tail.append(retry)
    def helper(s):
        e = s.e; o = s.o
        e.vmq = []; e.dsq = []
        D = 20
        e(f"""Lhelper:
        s_sub_u32 s{sR}, s2, 224
        s_mul_i32 s{sT0}, s{sR}, {64*896}
        v_lshrrev_b32 v{vT}, 2, v0
        v_mul_u32_u24 v{vT}, 896, v{vT}
        v_and_b32 v{vT+1}, 3, v0
        v_lshl_add_u32 v16, v{vT+1}, 4, v{vT}
        s_waitcnt lgkmcnt(0)
        s_load_dword s{sT}, s[{SWS}:{SWS+1}], {WS_E}""")
        for i in range(14): e(f"buffer_load_dwordx4 {v(D+4*i,4)}, v16, {srd(SX)}, s{sT0} offen offset:{64*i} ;#hx{i}")
        e(f"""v_mov_b32 v80, 0
        v_mov_b32 v81, 0
        v_mov_b32 v82, 0
        v_mov_b32 v83, 0
        v_mov_b32 v84, 0x3f803f80
        s_lshl_b32 s{sT0}, s{sR}, 9
        s_add_u32 s{sT0}, s{sT0}, {WS_ST}
        v_lshlrev_b32 v17, 1, v0
        v_add_u32 v17, s{sT0}, v17
        s_waitcnt lgkmcnt(0)
        s_add_u32 s{sT}, s{sT}, {TAGC}""")
        for i in range(14):
            e(f"WAIT vm:hx{i}")
            for d in range(4):
                e(f"v_dot2_f32_bf16 v{80+(d&1)}, v{D+4*i+d}, v84, v{80+(d&1)}\nv_dot2_f32_bf16 v{82+(d&1)}, v{D+4*i+d}, v{D+4*i+d}, v{82+(d&1)}")
        dp = lambda p: f"quad_perm:{p} row_mask:0xf bank_mask:0xf"
        e(f"""v_add_f32 v80, v80, v81
        v_add_f32 v82, v82, v83
        v_add_f32_dpp v80, v80, v80 {dp('[1,0,3,2]')}
        v_add_f32_dpp v82, v82, v82 {dp('[1,0,3,2]')}
        v_add_f32_dpp v80, v80, v80 {dp('[2,3,0,1]')}
        v_add_f32_dpp v82, v82, v82 {dp('[2,3,0,1]')}
        v_mul_f32 v80, {1/448!r}, v80
        v_mul_f32 v82, {1/448!r}, v82
        v_fma_f32 v82, -v80, v80, v82
        v_max_f32 v82, 0, v82
        v_add_f32 v82, 0x3727c5ac, v82
        v_rsq_f32 v88, v82
        v_mul_f32 v80, v80, v88
        v_sub_f32 v80, 0, v80
        v_mov_b32_dpp v89, v88 row_shl:4 row_mask:0xf bank_mask:0xf
        v_mov_b32_dpp v81, v80 row_shl:4 row_mask:0xf bank_mask:0xf
        v_cvt_pk_bf16_f32 v90, v80, v81
        v_mov_b32 v91, s{sT}
        v_and_b32 v{vT}, 7, v0
        v_cmp_eq_u32 vcc, 0, v{vT}
        s_and_saveexec_b64 s[{sEX}:{sEX+1}], vcc
        buffer_store_dwordx4 v[88:91], v17, {srd(SWS)}, 0 offen sc1
        s_mov_b64 exec, s[{sEX}:{sEX+1}]
        s_waitcnt vmcnt(0)""")
        if o["ts"]:
            for k in range(14): e(f"s_memrealtime s[{4+2*k}:{5+2*k}]")
            e("s_branch Lts")
        else: e("s_endpgm")
    def finish(s):
        e = s.e; o = s.o
        e(f"""s_cmp_lg_u32 s2, 0
        s_cbranch_scc1 Lts
        v_mov_b32 v{vT}, s{sT}
        v_mov_b32 v{vT+1}, {WS_E}
        v_cmp_eq_u32 vcc, 0, v0
        s_and_saveexec_b64 s[{sEX}:{sEX+1}], vcc
        s_cbranch_execz Lts
        buffer_store_dword v{vT}, v{vT+1}, {srd(SWS)}, 0 offen
        Lts:""")
        if o["ts"]:
            e(f"""s_mov_b64 exec, -1
            s_waitcnt vmcnt(0)
            s_memrealtime s[100:101]
            s_lshl_b32 s{sT0}, s2, 2
            s_add_u32 s{sT0}, s{sT0}, s{sW}
            s_lshl_b32 s{sT0}, s{sT0}, 6
            s_add_u32 s{sT0}, s{sT0}, {WS_TS}
            v_mov_b32 v{vT}, s{sT0}
            s_waitcnt lgkmcnt(0)
            v_mov_b32 v16, s98""")
            for k in range(14): e(f"v_mov_b32 v{17+k}, s{4+2*k}")
            e(f"""v_mov_b32 v31, s100
            v_cmp_eq_u32 vcc, 0, v{vL}
            s_and_saveexec_b64 s[{sEX}:{sEX+1}], vcc""")
            for k in range(4): e(f"buffer_store_dwordx4 {v(16+4*k,4)}, v{vT}, {srd(SWS)}, 0 offen offset:{16*k}")
            if o.get("dbg"):
                e(f"s_mov_b64 exec, -1\ns_cmp_ge_u32 s2, 224\ns_cbranch_scc1 Lend\ns_load_dwordx2 s[32:33], s[0:1], 88\nv_mov_b32 v40, s98")
                for k in range(14): e(f"v_writelane_b32 v40, s{4+2*k}, {k+1}")
                e(f"""v_writelane_b32 v40, s100, 15
                v_subrev_u32 v40, s98, v40
                v_lshlrev_b32 v41, 2, v{vL}
                s_mov_b32 s34, 64
                s_mov_b32 s35, 0x20000
                s_waitcnt lgkmcnt(0)
                buffer_atomic_{o['dbg']} v40, v41, s[32:35], 0 offen
                s_waitcnt vmcnt(0)""")
        e("s_endpgm")
    def build(s):
        e = s.e; o = s.o
        s.tail = []
        s.prologue(); s.p0(); s.pa()
        if o["stop"] != "PA":
            import gen_mlp
            gen_mlp.mlp(s)
        s.finish()
        for f in s.tail: f()
        s.helper()
        e("Lend:\ns_endpgm")
        n = e.fix(verbose=o.get("verbose", False))
        hdr = open("header.txt").read()
        txt = hdr + f"; @launch grid=(256,1,1) block=(256,1,1) lds={LDS_BYTES}\n" + f""".amdgcn_target "amdgcn-amd-amdhsa--gfx950"
.text
.globl {K}
.p2align 8
.type {K},@function
{K}:
""" + e.text() + f""".section .rodata,"a"
.p2align 6
.amdhsa_kernel {K}
  .amdhsa_next_free_vgpr 512
  .amdhsa_next_free_sgpr 102
  .amdhsa_accum_offset 256
  .amdhsa_group_segment_fixed_size 0
  .amdhsa_kernarg_size 104
  .amdhsa_user_sgpr_count 2
  .amdhsa_user_sgpr_kernarg_segment_ptr 1
  .amdhsa_system_sgpr_workgroup_id_x 1
.end_amdhsa_kernel
"""
        return txt, n
def parse_opts(args):
    o = {}
    for a in args:
        k, x = a.split("=")
        try: x = eval(x)
        except Exception: pass
        o[k] = x
    return o
if __name__ == "__main__":
    out = sys.argv[1]
    t, n = G(**parse_opts(sys.argv[2:])).build()
    open(out, "w").write(t)
    print(out, "nops inserted:", n, file=sys.stderr)
```

```python
import sys
from emit import *
K = "sequential_preLN__ssm_conv_h3__dense_activation_mish__prompt_kernel"

WS_E = 0
WS_F2 = 0x1000
WS_F3 = 0x10000
WS_ST = 0x50000
WS_X1 = 0x100000
WS_HT = 0x700000
WS_PART = 0x900000
WS_TS = 0x1600000
WS_SIZE = 0x1700000
TAGC = 0x9E3779B1

L_G = 0; GSTR = 4160
L_R = 33280; RSTR = 4608
L_X = 42496
L_EX = 42496
L_R1X = 25088
L_STG = 59392; STGS = 24576
L_SX = 157696
LDS_BYTES = 159744

SX, SK, SV, SF, SW1, SW2, SWS, SOUT, SB1, SSK = 32, 36, 40, 44, 48, 52, 56, 60, 64, 68
sT, sW, sG, sR, sTB, sJ = 72, 73, 74, 75, 76, 77
sD, sMASK, sPL, sPH = 78, 79, 80, 81
sM0, sOFF, sCNT, sT0, sT1, sT2, sT3 = 82, 83, 84, 85, 86, 87, 88
sSTG = 89
sDP = 90
sEX = 92
sPC = 94
def srd(b): return f"s[{b}:{b+3}]"
def v(a, n=1): return f"v{a}" if n == 1 else f"v[{a}:{a+n-1}]"
def ar(a, n=1): return f"a{a}" if n == 1 else f"a[{a}:{a+n-1}]"
vL, vTRA0, vTRA1, vTRB0, vTRB1 = 1, 2, 3, 4, 5
vDW = 6
vDH = 10
vT = 11

class G:
    def __init__(s, **o):
        s.o = dict(ts=False, stop=None, r1_early=True, spin=200000, f2s=128, nt=True, prefetch=True, r2=True, bbts=False, r2span=(1,2), mp='tb', r2all=True)
        s.o.update(o)
        s.e = E(); s.nts = 0
    def ts(s):
        if s.o["ts"]:
            s.ncall = getattr(s, "ncall", 0) + 1
            if s.ncall in s.o.get("tsskip", ()): return
            k = s.nts; s.nts += 1
            assert k < 14
            s.e(f"s_memrealtime s[{4+2*k}:{5+2*k}]")
    def dma_w(s, which, k0, n, lds, ldsreg=None, base=None, extra=0, tag=None):
        stride = 3584 if which == 1 else 896
        if base is None: base = "s96" if which == 1 else "s97"
        S = SW1 if which == 1 else SW2
        out = []
        for g in range(n // 2):
            ks = k0 + 2 * g
            reg = f"s{sSTG}" if ldsreg is None else ldsreg
            pre = [f"s_add_u32 m0, {reg}, {lds + 4096 * g}", f"s_add_u32 s{sOFF}, {base}, {ks * 16 * stride + extra}"]
            for i in range(4):
                ins = f"buffer_load_dwordx4 v{vDW+i}, {srd(S)}, s{sOFF} offen offset:{1024*i} lds"
                out.append("\n".join(pre + [ins]) if i == 0 else ins)
        return out
    def tr_w(s, n, lds, dst, a0=vTRA0, a1=vTRA1, tag="trw"):
        out = []
        for k in range(n):
            for T in range(2):
                for sec in range(2):
                    kind, r = dst(k, T)
                    reg = f"{kind}[{r+2*sec}:{r+2*sec+1}]"
                    out.append(f"ds_read_b64_tr_b16 {reg}, v{a0 if T == 0 else a1} offset:{lds + 2048*k + 512*sec} ;#{tag}")
        return out
    def set_dw(s, stride):
        e = s.e
        e(f"""v_lshrrev_b32 v{vT}, 3, v{vL}
        v_lshrrev_b32 v{vT+1}, 2, v{vL}
        v_and_b32 v{vT+1}, 4, v{vT+1}
        v_and_b32 v{vT+2}, 7, v{vL}
        v_xor_b32 v{vT+1}, v{vT+1}, v{vT+2}
        v_lshlrev_b32 v{vT+1}, 4, v{vT+1}
        v_mul_u32_u24 v{vT}, {stride}, v{vT}
        v_add_u32 v{vDW}, v{vT}, v{vT+1}""")
        for i in range(1, 4): e(f"v_add_u32 v{vDW+i}, {i*(8*stride-1024)}, v{vDW}")
    def tagcheck(s, regs, acc):
        out = [f"v_xor_b32 v{acc}, s{sT}, v{regs[0]}"]
        for r in regs[1:]: out.append(f"v_bitop3_b32 v{acc}, v{acc}, v{r}, s{sT} bitop3:0xf6")
        out.append(f"v_cmp_ne_u32 vcc, 0, v{acc}")
        return out
    def prologue(s):
        e = s.e; o = s.o
        if o["ts"]: e("s_memrealtime s[98:99]")
        e(f"""s_cmp_ge_u32 s2, 256
        s_cbranch_scc1 Lend
        s_load_dwordx2 s[{SWS}:{SWS+1}], s[0:1], 96
        s_load_dwordx2 s[{SK}:{SK+1}], s[0:1], 8
        s_load_dwordx2 s[{SV}:{SV+1}], s[0:1], 16
        s_load_dwordx2 s[{SX}:{SX+1}], s[0:1], 0
        s_load_dwordx2 s[{SSK}:{SSK+1}], s[0:1], 24
        s_load_dwordx2 s[{SF}:{SF+1}], s[0:1], 32
        s_load_dwordx2 s[{sDP}:{sDP+1}], s[0:1], 40
        s_load_dwordx2 s[{SW1}:{SW1+1}], s[0:1], 56
        s_load_dwordx2 s[{SB1}:{SB1+1}], s[0:1], 64
        s_load_dwordx2 s[{SW2}:{SW2+1}], s[0:1], 72
        s_load_dwordx2 s[{SOUT}:{SOUT+1}], s[0:1], 80""")
        if o["prefetch"]:
            e(f"""s_getpc_b64 s[{sPC}:{sPC+1}]
            Lpc:
            v_lshlrev_b32 v{vT}, 7, v0
            v_min_u32 v{vT}, Lend-Lpc, v{vT}
            global_load_dword v{vT+4}, v{vT}, s[{sPC}:{sPC+1}] ;#pf""")
        for b, n in ((SK, 1835008), (SV, 1835008), (SX, 1835008), (SSK, 3584), (SF, 4096), (SW1, 1605632), (SB1, 3584), (SW2, 1605632), (SOUT, 1835008), (SWS, WS_SIZE)):
            e(f"s_mov_b32 s{b+2}, {n}\ns_mov_b32 s{b+3}, 0x20000")
        e(f"""v_lshrrev_b32 v{vT}, 6, v0
        v_and_b32 v{vL}, 63, v0
        v_readfirstlane_b32 s{sW}, v{vT}
        s_mov_b32 s{sMASK}, 0xffff0000
        s_mov_b32 s{sPL}, 0x05040100
        s_mov_b32 s{sPH}, 0x07060302
        s_lshr_b32 s{sG}, s2, 5
        s_and_b32 s{sR}, s2, 31
        s_cmp_ge_u32 s2, 224
        s_cbranch_scc1 Lhelper""")
    def p0(s):
        e = s.e; o = s.o
        nt = " nt" if o["nt"] else ""
        vA, vA5, vKm, vS = 16, 17, 18, 19
        KR, VR, XR, SKR = 20, 31, 39, 48
        FR = 160
        vFa, vFb, vFc = 180, 181, 182
        e(f"""s_mul_i32 s{sT0}, s{sR}, {64*896}
        s_lshl_b32 s{sT1}, s{sG}, 7
        s_add_u32 s{sT0}, s{sT0}, s{sT1}
        v_lshrrev_b32 v{vT}, 5, v0
        v_and_b32 v{vT+1}, 31, v0
        v_mul_u32_u24 v{vA}, {8*896}, v{vT}
        v_lshl_add_u32 v{vA}, v{vT+1}, 2, v{vA}
        v_add_u32 v{vA}, s{sT0}, v{vA}
        v_add_u32 v{vA5}, {5*896}, v{vA}
        v_subrev_u32 v{vKm}, {3*896}, v{vA}
        s_lshl_b32 s{sT1}, s{sG}, 9
        v_lshlrev_b32 v{vS}, 4, v{vT+1}
        v_add_u32 v{vS}, s{sT1}, v{vS}
        v_and_b32 v{vT+2}, 127, v0
        v_lshlrev_b32 v{vT+2}, 4, v{vT+2}
        v_subrev_u32 v{vFa}, 32, v{vT+2}
        v_subrev_u32 v{vFb}, 16, v{vT+2}
        v_add_u32 v{vFc}, 2016, v{vT+2}
        s_waitcnt lgkmcnt(0)""")
        e(f"s_load_dword s{sT}, s[{SWS}:{SWS+1}], {WS_E}")
        e(f"buffer_load_dwordx4 {v(SKR,4)}, v{vS}, {srd(SSK)}, 0 offen ;#sk")
        for i in range(11):
            a, off = (vKm, i) if i < 3 else ((vA, i-3) if i < 8 else (vA5, i-8))
            e(f"buffer_load_dword v{KR+i}, v{a}, {srd(SK)}, 0 offen offset:{896*off}{nt} ;#k")
        for S, R, tg in ((SV, VR, "v"), (SX, XR, "x")):
            for i in range(8):
                a, off = (vA, i) if i < 5 else (vA5, i-5)
                e(f"buffer_load_dword v{R+i}, v{a}, {srd(S)}, 0 offen offset:{896*off}{nt} ;#{tg}")
        e(f"""s_lshl_b32 s{sT0}, s2, 2
        s_load_dword s{sD}, s[{sDP}:{sDP+1}], s{sT0}
        s_lshr_b32 s{sT1}, s{sW}, 1
        s_lshl_b32 s{sT0}, s2, 1
        s_add_u32 s{sT0}, s{sT0}, s{sT1}
        s_lshl_b32 s{sT0}, s{sT0}, 12
        s_add_u32 s{SF}, s{SF}, s{sT0}
        s_addc_u32 s{SF+1}, s{SF+1}, 0""")
        e(f"""buffer_load_dwordx4 {v(FR,4)}, v{vFa}, {srd(SF)}, 0 offen{nt} ;#f
        buffer_load_dwordx2 {v(FR+4,2)}, v{vFb}, {srd(SF)}, 0 offen{nt} ;#f
        buffer_load_dwordx4 {v(FR+8,4)}, v{vFc}, {srd(SF)}, 0 offen{nt} ;#f
        buffer_load_dwordx2 {v(FR+12,2)}, v{vFc}, {srd(SF)}, 0 offen offset:16{nt} ;#f
        buffer_load_dwordx4 {v(FR+16,4)}, v{vFc}, {srd(SF)}, 0 offen offset:2048{nt} ;#f
        buffer_load_dwordx2 {v(FR+6,2)}, v{vFc}, {srd(SF)}, 0 offen offset:2064{nt} ;#f""")
        if o["mp"] == "tb":
            e(f"""s_lshr_b32 s{sT0}, s2, 3
            s_mul_i32 s{sT1}, s{sT0}, 37
            s_lshr_b32 s{sT1}, s{sT1}, 8
            s_mul_i32 s{sT2}, s{sT1}, 7
            s_sub_u32 s{sJ}, s{sT0}, s{sT2}
            s_and_b32 s{sT0}, s2, 7
            s_lshl_b32 s{sT0}, s{sT0}, 2
            s_add_u32 s{sTB}, s{sT0}, s{sT1}""")
        else:
            e(f"""s_lshr_b32 s{sT0}, s2, 3
            s_and_b32 s{sT1}, s2, 1
            s_mul_i32 s{sT1}, s{sT1}, 28
            s_add_u32 s{sT0}, s{sT0}, s{sT1}
            s_lshr_b32 s{sJ}, s{sT0}, 3
            s_and_b32 s{sT0}, s{sT0}, 7
            s_and_b32 s{sT1}, s2, 6
            s_lshl_b32 s{sT1}, s{sT1}, 2
            s_add_u32 s{sTB}, s{sT0}, s{sT1}""")
        e(f"""s_mul_i32 s{sSTG}, s{sW}, {STGS}
        s_add_u32 s{sSTG}, s{sSTG}, {L_STG}
        s_lshl_b32 s96, s{sJ}, 9
        s_lshl_b32 s{sT0}, s{sW}, 7
        s_add_u32 s96, s96, s{sT0}
        s_mul_i32 s97, s{sJ}, {256*896}
        s_add_u32 s97, s97, s{sT0}""")
        s.set_dw(3584)
        def r1():
            e(s.dma_w(1, 0, 12, 0))
            e(f"s_lshl_b32 s{sT3}, s{sW}, 13")
            e(s.dma_w(1, 12, 4, L_R1X, f"s{sT3}"))
        if o["r1_early"]: r1()
        e(f"""v_lshrrev_b32 v{vT}, 5, v{vL}
        v_bfe_u32 v{vT+1}, v{vL}, 2, 2
        v_lshl_add_u32 v{vT}, v{vT}, 3, v{vT+1}
        v_lshlrev_b32 v{vT}, 7, v{vT}
        v_lshrrev_b32 v{vT+1}, 1, v{vT+1}
        v_lshlrev_b32 v{vT+1}, 6, v{vT+1}
        v_bfe_u32 v{vT+2}, v{vL}, 4, 1
        v_lshl_or_b32 v{vT+1}, v{vT+2}, 5, v{vT+1}
        v_or_b32 v{vT}, v{vT}, v{vT+1}
        v_and_b32 v{vT+1}, 3, v{vL}
        v_lshl_or_b32 v{vTRB0}, v{vT+1}, 3, v{vT}
        v_xor_b32 v{vTRB1}, 64, v{vTRB0}
        v_and_b32 v{vT+1}, 1, v{vL}
        v_lshl_or_b32 v{vT}, v{vT+1}, 4, v{vT}
        v_bfe_u32 v{vT+1}, v{vL}, 1, 1
        v_lshl_or_b32 v{vT}, v{vT+1}, 3, v{vT}
        v_add_u32 v{vTRA0}, s{sSTG}, v{vT}
        v_xor_b32 v{vTRA1}, 64, v{vTRA0}""")
        vSW, vSR, vPUB = 183, 184, 185
        e(f"""v_and_b32 v{vT}, 31, v0
        v_mul_u32_u24 v{vT}, 784, v{vT}
        v_lshrrev_b32 v{vT+1}, 5, v0
        v_lshl_add_u32 v{vSW}, v{vT+1}, 4, v{vT}
        v_lshrrev_b32 v{vT}, 3, v0
        v_and_b32 v{vT+1}, 7, v0
        v_mul_u32_u24 v{vT+2}, 784, v{vT}
        v_lshl_add_u32 v{vSR}, v{vT+1}, 4, v{vT+2}
        v_mul_u32_u24 v{vT+2}, 24576, v{vT}
        v_lshl_add_u32 v{vPUB}, v{vT+1}, 4, v{vT+2}
        s_mul_i32 s{sT0}, s{sG}, {32*24576}
        s_mul_i32 s{sT1}, s{sR}, 768
        s_add_u32 s{sT0}, s{sT0}, s{sT1}
        s_add_u32 s{sT0}, s{sT0}, {WS_X1}
        v_add_u32 v{vPUB}, s{sT0}, v{vPUB}
        s_waitcnt lgkmcnt(0)
        s_add_u32 s{sT}, s{sT}, {TAGC}""")
        KF, VF, SKF, KS, OUT = 52, 74, 90, 98, 116
        for t in (0, 7, 8, 15, 16, 23): e(f"v_mov_b32 v{OUT+t}, s{sT}")
        e(f"v_mov_b32 v{OUT+17}, 0\nv_mov_b32 v{OUT+22}, 0")
        e("WAIT vm:sk")
        for jj, (a, b, hi) in enumerate(((0, 2, 0), (0, 2, 1), (1, 3, 0), (1, 3, 1))):
            for h, r in enumerate((a, b)):
                e(f"v_and_b32 v{SKF+2*jj+h}, s{sMASK}, v{SKR+r}" if hi else f"v_lshlrev_b32 v{SKF+2*jj+h}, 16, v{SKR+r}")
        e("WAIT vm:k")
        s.ts()
        for i in range(11):
            e(f"v_lshlrev_b32 v{KF+2*i}, 16, v{KR+i}\nv_and_b32 v{KF+2*i+1}, s{sMASK}, v{KR+i}")
        for jj in range(4):
            for i in range(8):
                kk = KF + 2 * (i + 3 - jj)
                if jj == 0: e(f"v_pk_mul_f32 {v(KS+2*i,2)}, {v(SKF,2)}, {v(kk,2)}")
                else: e(f"v_pk_fma_f32 {v(KS+2*i,2)}, {v(SKF+2*jj,2)}, {v(kk,2)}, {v(KS+2*i,2)}")
        e("WAIT vm:v")
        for i in range(8):
            e(f"v_lshlrev_b32 v{VF+2*i}, 16, v{VR+i}\nv_and_b32 v{VF+2*i+1}, s{sMASK}, v{VR+i}")
        for i in range(8): e(f"v_pk_mul_f32 {v(KS+2*i,2)}, {v(KS+2*i,2)}, {v(VF+2*i,2)}")
        for ch, o0 in ((0, 2), (1, 10)):
            for d in range(4): e(f"v_cvt_pk_bf16_f32 v{OUT+o0+d}, v{KS+2*(7-2*d)+ch}, v{KS+2*(6-2*d)+ch}")
        e("WAIT vm:x")
        s.ts()
        for d, r in enumerate((1, 6, 9, 14)): e(f"v_perm_b32 v{OUT+r}, v{XR+2*d+1}, v{XR+2*d}, s{sPH}")
        for j in range(4): e(f"ds_write_b128 v{vSW}, {v(OUT+4*j,4)} offset:{128*j} ;#sw")
        for d in range(4): e(f"v_perm_b32 v{OUT+18+d}, v{XR+2*d+1}, v{XR+2*d}, s{sPL}")
        for j in range(4, 6): e(f"ds_write_b128 v{vSW}, {v(OUT+4*j,4)} offset:{128*j} ;#sw")
        e("WAIT ds:sw\ns_barrier")
        PB_ = 20
        for j in range(6): e(f"ds_read_b128 {v(PB_+4*j,4)}, v{vSR} offset:{128*j} ;#sr{j}")
        for j in range(6): e(f"WAIT ds:sr{j}\nbuffer_store_dwordx4 {v(PB_+4*j,4)}, v{vPUB}, {srd(SWS)}, 0 offen offset:{128*j} sc1 ;#pub")
        s.ts()
        if not o["r1_early"]: r1()
        e("WAIT vm:w1_15")
        e(s.tr_w(12, 0, lambda k, T: ("a", 8*k + 4*T)))
        e(f"""s_mul_i32 s{sT0}, s{sW}, {STGS - 8192}
        s_add_u32 s{sT0}, s{sT0}, {L_STG - L_R1X}
        v_subrev_u32 v{vT}, s{sT0}, v{vTRA0}
        v_subrev_u32 v{vT+1}, s{sT0}, v{vTRA1}""")
        e(s.tr_w(4, 0, lambda k, T: ("a", 8*(12+k) + 4*T), vT, vT+1))
        e("s_waitcnt lgkmcnt(0)\ns_barrier")
        s.ts()
        vGW = 186; AL = 20
        e(f"""s_lshr_b32 s{sT1}, s{sW}, 1
        s_mul_i32 s{sT0}, s{sT1}, {4*GSTR}
        v_and_b32 v{vT+2}, 127, v0
        v_lshlrev_b32 v{vT+3}, 4, v{vT+2}
        v_add_u32 v{vGW}, s{sT0}, v{vT+3}
        s_lshl_b32 s{sT2}, s{sD}, 16
        s_and_b32 s{sT3}, s{sD}, s{sMASK}
        s_cmp_eq_u32 s{sT1}, 0
        s_cselect_b32 s{sT2}, s{sT2}, s{sT3}
        v_lshlrev_b32 v{vT}, 16, v{FR+4}
        v_add_f32 v{vT}, s{sT2}, v{vT}
        v_and_b32 v{vT+1}, s{sMASK}, v{FR+4}
        v_cvt_pk_bf16_f32 v{vT}, v{vT}, v{vT+1}
        v_cmp_eq_u32 vcc, 1, v{vT+2}
        v_cndmask_b32 v{FR+4}, v{FR+4}, v{vT}, vcc""")
        for it, d in enumerate(([FR+i for i in range(6)], [FR+8+i for i in range(6)], [FR+16, FR+17, FR+18, FR+19, FR+6, FR+7])):
            B = AL + 16 * it
            for i in range(4): e(f"v_alignbit_b32 v{B+i}, v{d[i+1]}, v{d[i]}, 16")
            for i in range(4): e(f"v_mov_b32 v{B+4+i}, v{d[i+1]}")
            for i in range(4): e(f"v_alignbit_b32 v{B+8+i}, v{d[i+2]}, v{d[i+1]}, 16")
            for i in range(4): e(f"v_mov_b32 v{B+12+i}, v{d[i+2]}")
            if it == 2: e(f"v_cmp_gt_u32 vcc, 2, v{vT+2}\ns_and_saveexec_b64 s[{sEX}:{sEX+1}], vcc")
            for cp in range(4): e(f"ds_write_b128 v{vGW}, {v(B+4*cp,4)} offset:{L_G + GSTR*cp + 2048*it}")
            if it == 2: e(f"s_mov_b64 exec, s[{sEX}:{sEX+1}]")
        e(f"""s_mul_i32 s{sT0}, s{sT1}, {RSTR}
        v_add_u32 v{vT}, s{sT0}, v{vT+3}
        v_mov_b32 v20, 0
        v_mov_b32 v21, 0
        v_mov_b32 v22, 0
        v_mov_b32 v23, 0
        v_cmp_gt_u32 vcc, 30, v{vT+2}
        s_and_saveexec_b64 s[{sEX}:{sEX+1}], vcc
        ds_write_b128 v{vT}, v[20:23] offset:{L_R + 4096}
        s_mov_b64 exec, s[{sEX}:{sEX+1}]
        s_waitcnt lgkmcnt(0)
        s_barrier""")
    def pa(s):
        e = s.e; o = s.o
        ACC = 16; FA = [48, 80]; FB = [112, 144]; STT = 176; XB = 208; UU = 216; XX = 232
        IN = 112
        vAa, vBa, vIN, vRW, vXR, vST, vHS, vEW = 248, 249, 250, 251, 252, 253, 254, 255
        e(f"""s_lshr_b32 s{sT1}, s{sW}, 1
        s_and_b32 s{sT2}, s{sW}, 1
        v_and_b32 v{vT}, 3, v{vL}
        v_mul_u32_u24 v{vT}, {GSTR}, v{vT}
        v_bfe_u32 v{vT+1}, v{vL}, 2, 2
        v_lshl_add_u32 v{vT}, v{vT+1}, 3, v{vT}
        v_lshrrev_b32 v{vT+1}, 4, v{vL}
        v_lshl_add_u32 v{vT}, v{vT+1}, 4, v{vT}
        s_mul_i32 s{sT0}, s{sT1}, {4*GSTR}
        s_lshl_b32 s{sT3}, s{sT2}, 8
        s_add_u32 s{sT0}, s{sT0}, s{sT3}
        v_add_u32 v{vAa}, s{sT0}, v{vT}""")
        def rdA(bb):
            out = []
            for a in range(8):
                for h in range(2): out.append(f"ds_read_b64 {v(FA[bb&1]+4*a+2*h,2)}, v{vAa} offset:{L_G + 64*(8*a+bb) + 8*h} ;#A{bb}")
            return out
        def rdB(bb):
            return [f"ds_read_b128 {v(FB[bb&1]+4*m,4)}, v{vBa} offset:{L_R + 64*(56-8*m+bb)} ;#B{bb}_{m}" for m in range(8)]
        e(rdA(0))
        e(f"""v_and_b32 v{vT}, 15, v{vL}
        v_lshlrev_b32 v{vT+2}, 5, v{vT}
        v_lshlrev_b32 v{vT+3}, 4, v{vT+1}
        v_sub_u32 v{vT+3}, v{vT+3}, v{vT+2}
        s_mul_i32 s{sT0}, s{sT1}, {RSTR}
        s_add_u32 s{sT0}, s{sT0}, s{sT3}
        s_add_u32 s{sT0}, s{sT0}, 480
        v_add_u32 v{vBa}, s{sT0}, v{vT+3}
        v_lshl_add_u32 v{vT+2}, v{vT+1}, 3, v{vT+2}
        s_lshl_b32 s{sT0}, s{sT1}, 12
        s_lshl_b32 s{sT3}, s{sT2}, 11
        s_add_u32 s{sT0}, s{sT0}, s{sT3}
        v_add_u32 v{vXR}, s{sT0}, v{vT+2}
        s_lshl_b32 s{sT3}, s{sT2}, 13
        s_add_u32 s{sT3}, s{sT3}, {WS_ST}
        v_lshlrev_b32 v{vT+2}, 2, v{vT+2}
        v_add_u32 v{vST}, s{sT3}, v{vT+2}
        v_lshrrev_b32 v{vT+2}, 2, v{vT}
        v_mul_u32_u24 v{vT+2}, 57344, v{vT+2}
        v_and_b32 v{vT}, 3, v{vT}
        v_lshl_add_u32 v{vT+2}, v{vT}, 5, v{vT+2}
        v_lshl_add_u32 v{vT+2}, v{vT+1}, 3, v{vT+2}
        s_lshl_b32 s{sT0}, s2, 1
        s_add_u32 s{sT0}, s{sT0}, s{sT1}
        s_lshl_b32 s{sT0}, s{sT0}, 7
        s_mul_i32 s{sT3}, s{sT2}, {16*57344}
        s_add_u32 s{sT0}, s{sT0}, s{sT3}
        s_add_u32 s{sT0}, s{sT0}, {WS_HT}
        v_add_u32 v{vHS}, s{sT0}, v{vT+2}
        s_lshl_b32 s{sT0}, s{sW}, 12
        v_lshlrev_b32 v{vT}, 4, v{vL}
        v_add_u32 v{vEW}, s{sT0}, v{vT}
        v_lshrrev_b32 v{vT}, 3, v0
        v_mul_u32_u24 v{vT}, 768, v{vT}
        v_and_b32 v{vT+1}, 7, v0
        v_lshl_add_u32 v{vT}, v{vT+1}, 4, v{vT}
        s_mul_i32 s{sT0}, s2, 24576
        s_add_u32 s{sT0}, s{sT0}, {WS_X1}
        v_add_u32 v{vIN}, s{sT0}, v{vT}
        v_lshlrev_b32 v{vT}, 4, v0
        v_sub_u32 v{vRW}, 4080, v{vT}
        s_mov_b32 s{sCNT}, {o['spin']}
        s_waitcnt vmcnt(0)""")
        s.ts()
        e("Lpoll1:")
        for j in range(6): e(f"buffer_load_dwordx4 {v(IN+4*j,4)}, v{vIN}, {srd(SWS)}, 0 offen offset:{128*j} sc1 ;#in")
        e(f"s_sub_u32 s{sCNT}, s{sCNT}, 1\ns_cbranch_scc1 Lpoll1x\ns_waitcnt vmcnt(0)")
        e(s.tagcheck([IN, IN+7, IN+8, IN+15, IN+16, IN+23], vT+1))
        e("s_cbranch_vccnz Lpoll1\nLpoll1x:\ns_waitcnt vmcnt(0)")
        s.ts()
        e(f"""ds_write_b128 v{vRW}, {v(IN+2,4)} offset:{L_R}
        ds_write_b128 v{vRW}, {v(IN+10,4)} offset:{L_R+RSTR}
        ds_write_b128 v{vT}, {v(IN+18,4)} offset:{L_X}
        v_add_u32 v{vT}, {L_X+4096}, v{vT}
        ds_write2_b32 v{vT}, v{IN+1}, v{IN+6} offset0:0 offset1:1
        ds_write2_b32 v{vT}, v{IN+9}, v{IN+14} offset0:2 offset1:3""")
        stats = []
        for qq in range(4):
            for h in range(2): stats.append(f"buffer_load_dwordx4 {v(STT+8*qq+4*h,4)}, v{vST}, {srd(SWS)}, 0 offen offset:{(2048*qq)%4096+16*h} ;#st" if qq < 2 else
                                            f"buffer_load_dwordx4 {v(STT+8*qq+4*h,4)}, v{vST}, {srd(SWS)}, s{sT3} offen offset:{(2048*qq)%4096+16*h} ;#st")
        e(f"s_mov_b32 s{sT3}, 4096")
        e(stats)
        e("s_waitcnt lgkmcnt(0)\ns_barrier")
        e(rdB(0))
        xrd = [f"ds_read_b64 {v(XB+2*qq,2)}, v{vXR} offset:{L_X + 512*qq} ;#xb" for qq in range(4)]
        r2 = s.dma_w(1, 16, 12, 0) if o["r2"] else []
        if o["bbts"]: s.ts()
        up = []
        up.append("WAIT vm:st")
        up += s.tagcheck([STT+4*i+3 for i in range(8)], vT+1)
        up.append("s_cbranch_vccnz Lstretry\nLstok:")
        for qq in range(4):
            for r in range(4):
                xs = XB + 2*qq + r//2; bs = STT + 8*qq + 4*(r//2) + 2; a_ = STT + 8*qq + 4*(r//2) + (r & 1)
                un = (lambda d, src: f"v_and_b32 v{d}, s{sMASK}, v{src}") if r & 1 else (lambda d, src: f"v_lshlrev_b32 v{d}, 16, v{src}")
                up += [un(XX+4*qq+r, xs), un(UU+4*qq+r, bs), f"v_fmac_f32 v{UU+4*qq+r}, v{XX+4*qq+r}, v{a_}"]
        for bb in range(4):
            mf = []
            for m in range(8):
                for a in range(8 - m):
                    q = a + m
                    c = "0" if (bb == 0 and m == 0) else v(ACC+4*q, 4)
                    ins = f"v_mfma_f32_16x16x32_bf16 {v(ACC+4*q,4)}, {v(FA[bb&1]+4*a,4)}, {v(FB[bb&1]+4*m,4)}, {c}"
                    if bb == 0 and a == 0: ins = f"WAIT ds:B0_{m}\n" + ins
                    mf.append(ins)
            fill = []
            if bb < 3:
                A_, B_ = rdA(bb+1), rdB(bb+1)
                fill = interleave(A_, B_)
            if o["r2all"]:
                q = [r2[6*bb + i] for i in range(6)] if r2 else []
                if bb == 0: mf = interleave(interleave(mf, xrd + fill, 8, 32), q, 0, 64)
                elif bb == 1: mf = interleave(interleave(mf, fill, 0, 28), ["s_barrier"] + q, 2, 60)
                elif bb == 2: mf = interleave(interleave(mf, fill, 0, 28), q, 0, 60)
                else: mf = interleave(mf, q[:1] + up + q[1:], 0, 34)
            elif bb == 0: mf = interleave(mf, xrd + fill, 8, 32)
            elif bb == 1: mf = interleave(interleave(mf, fill, 0, 28), ["s_barrier"] + r2[:12], 2, 56)
            elif bb == 2: mf = interleave(interleave(mf, fill, 0, 28), r2[12:], 0, 56)
            else: mf = interleave(mf, up, 0, 34)
            if bb > 0: e("s_waitcnt lgkmcnt(0)")
            e(mf)
            if o["bbts"] and bb < 3: s.ts()
        s.ts()
        e("s_nop 7")
        e(f"s_bitcmp1_b32 s{sW}, 0\ns_cbranch_scc1 Lep1")
        dsq0 = list(e.dsq)
        for hb in range(2):
            if hb: e("Lep1:"); e.dsq = list(dsq0)
            snd = ACC + 16*(1-hb); keep = ACC + 16*hb
            for qq in range(4): e(f"ds_write_b128 v{vEW}, {v(snd+4*qq,4)} offset:{L_EX + 1024*qq}")
            for i in range(16): e(f"v_fmac_f32 v{XX+i}, v{UU+i}, v{keep+i}")
            if not hb: e("s_branch Lep2")
        e(f"""Lep2:
        v_xor_b32 v{vEW}, 4096, v{vEW}
        s_waitcnt lgkmcnt(0)
        s_barrier""")
        RC = 48
        for qq in range(4): e(f"ds_read_b128 {v(RC+4*qq,4)}, v{vEW} offset:{L_EX + 1024*qq} ;#rc{qq}")
        for qq in range(4):
            e(f"s_mov_b32 s{sT0}, {4*qq*57344}\nWAIT ds:rc{qq}")
            for r in range(4): e(f"v_fmac_f32 v{XX+4*qq+r}, v{UU+4*qq+r}, v{RC+4*qq+r}")
            e(f"""v_cvt_pk_bf16_f32 v{RC+16+2*qq}, v{XX+4*qq}, v{XX+4*qq+1}
            v_cvt_pk_bf16_f32 v{RC+17+2*qq}, v{XX+4*qq+2}, v{XX+4*qq+3}
            buffer_store_dwordx2 {v(RC+16+2*qq,2)}, v{vHS}, {srd(SWS)}, s{sT0} offen sc1 ;#h""")
        s.ts()
        def retry():
            e(f"Lstretry:\ns_mov_b32 s{sCNT}, {o['spin']}\nLstretry1:")
            for x in stats: e(x.replace(" ;#", " sc1 ;#"))
            e(f"s_sub_u32 s{sCNT}, s{sCNT}, 1\ns_cbranch_scc1 Lstretry2\ns_waitcnt vmcnt(0)")
            e(s.tagcheck([STT+4*i+3 for i in range(8)], vT+1))
            e("s_cbranch_vccnz Lstretry1\nLstretry2:\ns_waitcnt vmcnt(0)\ns_branch Lstok")
        s.tail.append(retry)
    def helper(s):
        e = s.e; o = s.o
        e.vmq = []; e.dsq = []
        D = 20
        e(f"""Lhelper:
        s_sub_u32 s{sR}, s2, 224
        s_mul_i32 s{sT0}, s{sR}, {64*896}
        v_lshrrev_b32 v{vT}, 2, v0
        v_mul_u32_u24 v{vT}, 896, v{vT}
        v_and_b32 v{vT+1}, 3, v0
        v_lshl_add_u32 v16, v{vT+1}, 4, v{vT}
        s_waitcnt lgkmcnt(0)
        s_load_dword s{sT}, s[{SWS}:{SWS+1}], {WS_E}""")
        for i in range(14): e(f"buffer_load_dwordx4 {v(D+4*i,4)}, v16, {srd(SX)}, s{sT0} offen offset:{64*i} ;#hx{i}")
        e(f"""v_mov_b32 v80, 0
        v_mov_b32 v81, 0
        v_mov_b32 v82, 0
        v_mov_b32 v83, 0
        v_mov_b32 v84, 0x3f803f80
        s_lshl_b32 s{sT0}, s{sR}, 9
        s_add_u32 s{sT0}, s{sT0}, {WS_ST}
        v_lshlrev_b32 v17, 1, v0
        v_add_u32 v17, s{sT0}, v17
        s_waitcnt lgkmcnt(0)
        s_add_u32 s{sT}, s{sT}, {TAGC}""")
        for i in range(14):
            e(f"WAIT vm:hx{i}")
            for d in range(4):
                e(f"v_dot2_f32_bf16 v{80+(d&1)}, v{D+4*i+d}, v84, v{80+(d&1)}\nv_dot2_f32_bf16 v{82+(d&1)}, v{D+4*i+d}, v{D+4*i+d}, v{82+(d&1)}")
        dp = lambda p: f"quad_perm:{p} row_mask:0xf bank_mask:0xf"
        e(f"""v_add_f32 v80, v80, v81
        v_add_f32 v82, v82, v83
        v_add_f32_dpp v80, v80, v80 {dp('[1,0,3,2]')}
        v_add_f32_dpp v82, v82, v82 {dp('[1,0,3,2]')}
        v_add_f32_dpp v80, v80, v80 {dp('[2,3,0,1]')}
        v_add_f32_dpp v82, v82, v82 {dp('[2,3,0,1]')}
        v_mul_f32 v80, {1/448!r}, v80
        v_mul_f32 v82, {1/448!r}, v82
        v_fma_f32 v82, -v80, v80, v82
        v_max_f32 v82, 0, v82
        v_add_f32 v82, 0x3727c5ac, v82
        v_rsq_f32 v88, v82
        v_mul_f32 v80, v80, v88
        v_sub_f32 v80, 0, v80
        v_mov_b32_dpp v89, v88 row_shl:4 row_mask:0xf bank_mask:0xf
        v_mov_b32_dpp v81, v80 row_shl:4 row_mask:0xf bank_mask:0xf
        v_cvt_pk_bf16_f32 v90, v80, v81
        v_mov_b32 v91, s{sT}
        v_and_b32 v{vT}, 7, v0
        v_cmp_eq_u32 vcc, 0, v{vT}
        s_and_saveexec_b64 s[{sEX}:{sEX+1}], vcc
        buffer_store_dwordx4 v[88:91], v17, {srd(SWS)}, 0 offen sc1
        s_mov_b64 exec, s[{sEX}:{sEX+1}]
        s_waitcnt vmcnt(0)""")
        if o["ts"]:
            for k in range(14): e(f"s_memrealtime s[{4+2*k}:{5+2*k}]")
            e("s_branch Lts")
        else: e("s_endpgm")
    def finish(s):
        e = s.e; o = s.o
        e(f"""s_cmp_lg_u32 s2, 0
        s_cbranch_scc1 Lts
        v_mov_b32 v{vT}, s{sT}
        v_mov_b32 v{vT+1}, {WS_E}
        v_cmp_eq_u32 vcc, 0, v0
        s_and_saveexec_b64 s[{sEX}:{sEX+1}], vcc
        s_cbranch_execz Lts
        buffer_store_dword v{vT}, v{vT+1}, {srd(SWS)}, 0 offen
        Lts:""")
        if o["ts"]:
            e(f"""s_mov_b64 exec, -1
            s_waitcnt vmcnt(0)
            s_memrealtime s[100:101]
            s_lshl_b32 s{sT0}, s2, 2
            s_add_u32 s{sT0}, s{sT0}, s{sW}
            s_lshl_b32 s{sT0}, s{sT0}, 6
            s_add_u32 s{sT0}, s{sT0}, {WS_TS}
            v_mov_b32 v{vT}, s{sT0}
            s_waitcnt lgkmcnt(0)
            v_mov_b32 v16, s98""")
            for k in range(14): e(f"v_mov_b32 v{17+k}, s{4+2*k}")
            e(f"""v_mov_b32 v31, s100
            v_cmp_eq_u32 vcc, 0, v{vL}
            s_and_saveexec_b64 s[{sEX}:{sEX+1}], vcc""")
            for k in range(4): e(f"buffer_store_dwordx4 {v(16+4*k,4)}, v{vT}, {srd(SWS)}, 0 offen offset:{16*k}")
            if o.get("amp") is not None:
                k = o["amp"]; r = "s100" if k == 15 else f"s{4+2*(k-1)}"
                e(f"""s_cmp_lg_u32 s2, {o.get('ampwg', 100)}
                s_cbranch_scc1 Lend
                s_sub_u32 s32, {r}, s98
                s_min_u32 s32, s32, 5000
                s_lshl_b32 s32, s32, 3
                s_mov_b32 s33, 200000
                Lamp:
                s_memrealtime s[34:35]
                s_sub_u32 s33, s33, 1
                s_cbranch_scc1 Lend
                s_waitcnt lgkmcnt(0)
                s_sub_u32 s34, s34, s100
                s_cmp_lt_u32 s34, s32
                s_cbranch_scc1 Lamp""")
            if o.get("dbg"):
                e(f"s_mov_b64 exec, -1\ns_cmp_ge_u32 s2, 224\ns_cbranch_scc1 Lend\ns_load_dwordx2 s[32:33], s[0:1], 88\nv_mov_b32 v40, s98")
                for k in range(14): e(f"v_writelane_b32 v40, s{4+2*k}, {k+1}")
                e(f"""v_writelane_b32 v40, s100, 15
                v_subrev_u32 v40, s98, v40
                v_lshlrev_b32 v41, 2, v{vL}
                s_mov_b32 s34, 64
                s_mov_b32 s35, 0x20000
                s_waitcnt lgkmcnt(0)
                buffer_atomic_{o['dbg']} v40, v41, s[32:35], 0 offen
                s_waitcnt vmcnt(0)""")
        e("s_endpgm")
    def build(s):
        e = s.e; o = s.o
        s.tail = []
        s.prologue(); s.p0(); s.pa()
        if o["stop"] != "PA":
            import gen_mlp
            gen_mlp.mlp(s)
        s.finish()
        for f in s.tail: f()
        s.helper()
        e("Lend:\ns_endpgm")
        n = e.fix(verbose=o.get("verbose", False))
        hdr = open("header.txt").read()
        txt = hdr + f"; @launch grid=(256,1,1) block=(256,1,1) lds={LDS_BYTES}\n" + f""".amdgcn_target "amdgcn-amd-amdhsa--gfx950"
.text
.globl {K}
.p2align 8
.type {K},@function
{K}:
""" + e.text() + f""".section .rodata,"a"
.p2align 6
.amdhsa_kernel {K}
  .amdhsa_next_free_vgpr 512
  .amdhsa_next_free_sgpr 102
  .amdhsa_accum_offset 256
  .amdhsa_group_segment_fixed_size 0
  .amdhsa_kernarg_size 104
  .amdhsa_user_sgpr_count 2
  .amdhsa_user_sgpr_kernarg_segment_ptr 1
  .amdhsa_system_sgpr_workgroup_id_x 1
.end_amdhsa_kernel
"""
        return txt, n
def parse_opts(args):
    o = {}
    for a in args:
        k, x = a.split("=")
        try: x = eval(x)
        except Exception: pass
        o[k] = x
    return o
if __name__ == "__main__":
    out = sys.argv[1]
    t, n = G(**parse_opts(sys.argv[2:])).build()
    open(out, "w").write(t)
    print(out, "nops inserted:", n, file=sys.stderr)
```
